```python
import torch

def _softmax(x, axis=-1):
    return torch.softmax(x, dim=axis)

def _gelu(x):
    return torch.nn.functional.gelu(x, approximate='tanh')

def _silu(x):
    return torch.nn.functional.silu(x)

def _sigmoid(x):
    return torch.sigmoid(x)

def _layernorm(x, axis=-1, eps=1e-05):
    m = x.mean(dim=axis, keepdim=True)
    v = x.var(dim=axis, keepdim=True, unbiased=False)
    return (x - m) / torch.sqrt(v + eps)

def _scatter_add(tgt, idx, src, axis=0):
    return tgt.clone().index_add_(axis, idx, src)

def _segment_sum(src, seg, n):
    out = torch.zeros((n,) + src.shape[1:], dtype=src.dtype)
    return out.index_add_(0, seg, src)

def _pad(x, pw):
    flat = tuple((v for pair in reversed(pw) for v in pair))
    return torch.nn.functional.pad(x, flat)
kernel_name = 'adaLN_cond__grouped_kv_mqa__dense_activation_relu__prompt'

def setup_inputs():

    _w = lambda a: (lambda t: t.to(torch.bfloat16) if t.is_floating_point() else t)(torch.as_tensor(a))

    def _A_setup():
        B, S, D, H = (1, 2048, 576, 32)
        Dh = D // H
        return {'x': _w((lambda *s: torch.randn(*s, dtype=torch.bfloat16) * 0.05)(B, S, D)), 'wq': _w((lambda *s: torch.randn(*s, dtype=torch.bfloat16) * 0.05)(D, H * Dh)), 'wk': _w((lambda *s: torch.randn(*s, dtype=torch.bfloat16) * 0.05)(D, Dh)), 'wv': _w((lambda *s: torch.randn(*s, dtype=torch.bfloat16) * 0.05)(D, Dh)), 'wo': _w((lambda *s: torch.randn(*s, dtype=torch.bfloat16) * 0.05)(H * Dh, D))}
    _A_in = _A_setup()

    def _B_setup():
        B, S, D, Dff = (1, 2048, 576, 4608)
        return {'x': _w((lambda *s: torch.randn(*s, dtype=torch.bfloat16) * 0.05)(B, S, D)), 'w1': _w((lambda *s: torch.randn(*s, dtype=torch.bfloat16) * 0.05)(D, Dff)), 'w2': _w((lambda *s: torch.randn(*s, dtype=torch.bfloat16) * 0.05)(Dff, D))}
    _B_in = _B_setup()
    return {'A_x': _A_in['x'], 'A_wq': _A_in['wq'], 'A_wk': _A_in['wk'], 'A_wv': _A_in['wv'], 'A_wo': _A_in['wo'], 'B_x': _B_in['x'], 'B_w1': _B_in['w1'], 'B_w2': _B_in['w2'], 'c': _w((lambda *s: torch.randn(*s, dtype=torch.bfloat16) * 0.1)(1, 576) * 8.0), 'w_mod': _w((lambda *s: torch.randn(*s, dtype=torch.bfloat16) * 0.1)(576, 6 * 576) * 576 ** (-0.5) * 8.0)}

def reference(A_x, A_wq, A_wk, A_wv, A_wo, B_x, B_w1, B_w2, c, w_mod):

    def _A_ref(x, wq, wk, wv, wo):
        B, S, D = x.shape
        H = 32
        Dh = D // H
        q = (lambda x, *d: x.permute(*d))((x @ wq).reshape(B, S, H, Dh), 0, 2, 1, 3)
        k = x @ wk
        v = x @ wv
        scores = torch.einsum('bhqd,bkd->bhqk', q, k) * Dh ** (-0.5)
        p = _softmax(scores, axis=-1)
        o = torch.einsum('bhqk,bkd->bhqd', p, v)
        return (lambda x, *d: x.permute(*d))(o, 0, 2, 1, 3).reshape(B, S, H * Dh) @ wo

    def _B_ref(x, w1, w2):
        h = torch.einsum('bsd,df->bsf', x, w1)
        zero = torch.zeros_like(h)
        h = torch.maximum(h, zero)
        return torch.einsum('bsf,fd->bsd', h, w2)
    x = A_x
    mod = (_silu(c) @ w_mod).reshape(c.shape[0], 6, 1, -1)
    sa, ca, ga, sb, cb, gb = (mod[:, 0].clone(), mod[:, 1].clone(), mod[:, 2].clone(), mod[:, 3].clone(), mod[:, 4].clone(), mod[:, 5].clone())
    h = _layernorm(x, axis=-1) * (1 + ca) + sa
    x = x + ga * _A_ref(h, A_wq, A_wk, A_wv, A_wo)
    h = _layernorm(x, axis=-1) * (1 + cb) + sb
    x = x + gb * _B_ref(h, B_w1, B_w2)
    return x
```

```python
import re

REG_RE = re.compile(r'^(-|abs\()?([vas])(\d+)\)?$')
RNG_RE = re.compile(r'^(-)?([vas])\[(\d+):(\d+)\]$')

TRANS = ('v_exp_', 'v_log_', 'v_rcp_', 'v_rsq_', 'v_sqrt_', 'v_sin_', 'v_cos_')


def parse_reg(tok):
    tok = tok.strip()
    m = REG_RE.match(tok)
    if m:
        return {(m.group(2), int(m.group(3)))}
    m = RNG_RE.match(tok)
    if m:
        return {(m.group(2), i) for i in range(int(m.group(3)), int(m.group(4)) + 1)}
    if tok == 'vcc':
        return {('s', 106), ('s', 107)}
    if tok == 'vcc_lo':
        return {('s', 106)}
    if tok == 'vcc_hi':
        return {('s', 107)}
    if tok == 'exec':
        return {('x', 0)}
    if tok == 'm0':
        return {('m', 0)}
    return set()


class Ins:
    __slots__ = ('text', 'op', 'defs', 'uses', 'kind', 'passes', 'srcc', 'ab', 'label', 'target', 'ws', 'dpp', 'lds', 'wide_store_data', 'sgpr_uses')

    def __init__(self, text):
        self.text = text
        self.op = None
        self.defs = set(); self.uses = set()
        self.kind = 'other'; self.passes = 0; self.srcc = set(); self.ab = set()
        self.label = None; self.target = None; self.ws = 1; self.dpp = False; self.lds = False
        self.wide_store_data = set()
        code = text.split(';')[0].strip()
        if not code or code.startswith('.'):
            self.kind = 'none'; self.ws = 0
            return
        if code.endswith(':'):
            self.kind = 'label'; self.label = code[:-1]; self.ws = 0
            return
        parts = code.split(None, 1)
        op = parts[0]; self.op = op
        rest = parts[1] if len(parts) > 1 else ''
        ops = [o.strip() for o in rest.split(',')] if rest else []
        mods = ''
        if ops:
            last = ops[-1].split(None, 1)
            ops[-1] = last[0]
            mods = last[1] if len(last) > 1 else ''
        fixed = []
        for o in ops:
            fixed.append(o.split()[0] if o else o)
        regs = [parse_reg(o) for o in fixed]
        allregs = set().union(*regs) if regs else set()
        if 'dpp' in op or 'row_' in rest or 'quad_perm' in rest or 'wave_' in rest:
            self.dpp = True
        if op == 's_nop':
            self.kind = 'nop'; self.ws = int(fixed[0], 0) + 1
        elif op in ('s_branch',) or op.startswith('s_cbranch'):
            self.kind = 'branch'; self.target = fixed[0]
        elif op == 's_endpgm':
            self.kind = 'end'
        elif op.startswith('v_mfma'):
            self.kind = 'mfma'
            self.passes = 8 if '32x32' in op else 4
            self.defs = regs[0]; self.ab = regs[1] | regs[2]; self.srcc = regs[3]
            self.uses = self.ab | self.srcc
        elif op.startswith('v_cmp'):
            self.kind = 'valu'; self.defs = set(regs[0]); self.uses = set().union(*regs[1:])
            if op.startswith('v_cmpx'):
                self.defs |= {('x', 0)}
        elif op.startswith('v_readfirstlane') or op.startswith('v_readlane'):
            self.kind = 'valu'; self.defs = regs[0]; self.uses = set().union(*regs[1:])
        elif op.startswith('v_permlane') and 'swap' in op:
            self.kind = 'valu'; self.defs = regs[0] | regs[1]; self.uses = regs[0] | regs[1]
        elif op.startswith('v_'):
            self.kind = 'trans' if op.startswith(TRANS) else 'valu'
            self.defs = set(regs[0]); self.uses = set().union(*regs[1:]) if len(regs) > 1 else set()
            if '_co_' in op:
                self.defs |= regs[1]; self.uses = set().union(*regs[2:])
            if op.startswith(('v_fmac', 'v_dot2c', 'v_pk_fmac', 'v_writelane')) or 'UNUSED_PRESERVE' in rest or self.dpp:
                self.uses |= regs[0]
            if op.startswith('v_cndmask') and len(fixed) == 3:
                self.uses |= parse_reg('vcc')
        elif op.startswith(('buffer_load', 'global_load', 'flat_load')):
            self.kind = 'vmem'
            if ' lds' in (' ' + mods) or 'load_lds' in op:
                self.lds = True; self.uses = allregs | {('m', 0)}
            else:
                self.defs = regs[0]; self.uses = set().union(*regs[1:])
                if 'd16' in op:
                    self.uses |= regs[0]
        elif op.startswith(('buffer_store', 'global_store', 'flat_store', 'buffer_atomic', 'global_atomic')):
            self.kind = 'vmem'; self.uses = allregs
            if 'x3' in op or 'x4' in op:
                self.wide_store_data = regs[0] if op.startswith('buffer') else regs[1]
        elif op.startswith('buffer_'):
            self.kind = 'vmem'
        elif op.startswith('ds_'):
            self.kind = 'ds'
            if op.startswith(('ds_read', 'ds_bpermute', 'ds_permute', 'ds_swizzle')):
                self.defs = regs[0]; self.uses = set().union(*regs[1:]) if len(regs) > 1 else set()
            else:
                self.uses = allregs
        elif op.startswith('s_'):
            self.kind = 'salu'
            if op.startswith(('s_cmp', 's_waitcnt', 's_barrier', 's_setprio', 's_sleep', 's_bitcmp')):
                self.uses = allregs
            elif regs:
                self.defs = set(regs[0]); self.uses = set().union(*regs[1:]) if len(regs) > 1 else set()
                if 'saveexec' in op:
                    self.defs |= {('x', 0)}


def vg(s):
    return {r for r in s if r[0] in 'va'}


def sg(s):
    return {r for r in s if r[0] == 's'}


def required(p, c):
    need = 0
    pv = p.kind in ('valu', 'trans')
    cv = c.kind in ('valu', 'trans')
    if pv:
        pd = vg(p.defs)
        if c.kind == 'mfma' and pd & c.uses:
            need = max(need, 2)
        if cv and c.dpp and pd & c.uses:
            need = max(need, 2)
        if cv and c.op.startswith('v_permlane') and pd & c.uses:
            need = max(need, 2)
        if cv and c.op.startswith(('v_readfirstlane', 'v_readlane')) and pd & c.uses:
            need = max(need, 1)
        if p.kind == 'trans' and (c.kind == 'valu' or c.kind in ('vmem', 'ds')) and pd & c.uses:
            need = max(need, 1)
        if ('sdwa' in p.op or 'op_sel' in p.text) and cv and pd & (c.uses | c.defs):
            need = max(need, 1)
        ps = sg(p.defs)
        if ps:
            if c.kind == 'vmem' and ps & c.uses:
                need = max(need, 5)
            if cv and ps & c.uses:
                need = max(need, 4 if c.op.startswith(('v_readlane', 'v_writelane', 'v_div_fmas')) else 2)
            if c.kind == 'salu' and ps & c.uses:
                need = max(need, 1)
            if c.kind == 'branch' and 'vcc' in c.op and ps & parse_reg('vcc'):
                need = max(need, 5)
        if ('x', 0) in p.defs:
            if c.kind == 'mfma':
                need = max(need, 4)
            if cv and (c.dpp):
                need = max(need, 5)
            if cv and c.op.startswith(('v_readfirstlane', 'v_readlane', 'v_writelane', 'v_permlane')):
                need = max(need, 4)
    if p.kind == 'mfma':
        n_ab = {4: 8, 8: 12}[p.passes]
        n_ovl = {4: 6, 8: 10}[p.passes]
        n_war = {4: 3, 8: 7}[p.passes]
        if c.kind == 'mfma':
            if p.defs & c.ab:
                need = max(need, n_ab)
            if p.defs & c.srcc:
                if not (p.defs == c.srcc and p.passes == c.passes):
                    need = max(need, n_ovl)
            elif p.defs & c.defs:
                need = max(need, n_ovl)
        elif cv or c.kind in ('vmem', 'ds'):
            if p.defs & (c.uses | c.defs):
                need = max(need, n_ab)
            if cv and p.srcc & c.defs:
                need = max(need, n_war)
    if p.kind == 'vmem' and p.wide_store_data:
        if (cv or c.kind == 'mfma') and p.wide_store_data & c.defs:
            need = max(need, 2)
        elif p.wide_store_data & c.defs:
            need = max(need, 1)
    if p.kind == 'salu' and ('m', 0) in p.defs and c.kind == 'vmem' and c.lds:
        need = max(need, 1)
    return need


MAXW = 13


def pad_hazards(lines, verbose=False):
    ins = [Ins(l) for l in lines]
    total = 0

    def maps():
        labels = {x.label: i for i, x in enumerate(ins) if x.kind == 'label'}
        br_to = {}
        for i, x in enumerate(ins):
            if x.kind == 'branch' and x.target in labels:
                br_to.setdefault(labels[x.target], []).append(i)
        return br_to
    br_to = maps()
    i = 0
    while i < len(ins):
        c = ins[i]
        if c.kind in ('none', 'label', 'nop', 'end'):
            i += 1
            continue
        worst = 0
        stack = [(i, 0)]
        seen = {}
        while stack:
            j, d = stack.pop()
            preds = []
            if j > 0:
                p = ins[j - 1]
                if not (p.kind == 'end' or (p.kind == 'branch' and p.op == 's_branch')):
                    preds.append(j - 1)
            if ins[j].kind == 'label':
                preds += br_to.get(j, [])
            for pj in preds:
                p = ins[pj]
                if p.kind not in ('none', 'label', 'nop'):
                    r = required(p, c)
                    if r > d:
                        worst = max(worst, r - d)
                nd = d + p.ws
                if nd < MAXW and seen.get(pj, 99) > nd:
                    seen[pj] = nd
                    stack.append((pj, nd))
        if worst > 0:
            ins.insert(i, Ins(f'    s_nop {worst - 1}    ; auto-pad'))
            total += 1
            if verbose:
                print('pad', worst, 'before', c.text)
            br_to = maps()
            i += 1
        i += 1
    return [x.text for x in ins], total


class Kern:
    def __init__(self, name):
        self.name = name
        self.lines = []
        self.nlab = 0

    def __call__(self, text):
        for l in text.strip('\n').split('\n'):
            l = l.strip()
            if not l:
                continue
            if l.endswith(':') or l.startswith('.'):
                self.lines.append(l)
            else:
                self.lines.append('    ' + l)

    def stamp(self, i):
        import os
        if os.environ.get('STAMP'):
            self(f's_memtime s[{70+2*i}:{71+2*i}]')

    def lab(self, base='L'):
        self.nlab += 1
        return f'{self.name}_{base}{self.nlab}'

    def srd(self, s, lo, hi, nbytes, off=0):
        if off:
            self(f's_add_u32 s{s}, s{lo}, {off}\ns_addc_u32 s{s+1}, s{hi}, 0')
        else:
            self(f's_mov_b32 s{s}, s{lo}\ns_mov_b32 s{s+1}, s{hi}')
        self(f's_mov_b32 s{s+2}, {nbytes}\ns_mov_b32 s{s+3}, 0x00020000')

    def finish(self, vgpr, agpr=0, sgpr=102):
        import os
        if os.environ.get('STAMP'):
            from layout import WS
            kid = int(self.name[1])
            pre = ['    s_memrealtime s[90:91]', '    s_memtime s[92:93]', '    v_readfirstlane_b32 s89, v0', '    s_mov_b32 s88, s2'] + [f'    s_mov_b32 s{70+2*i}, 0' for i in range(4)]
            ex = f'{self.name}_stamp_exit'
            self.lines = pre + [(f'    s_branch {ex}' if l.strip() == 's_endpgm' else l) for l in self.lines]
            self(f'''
{ex}:
    s_mov_b64 exec, -1
    s_waitcnt vmcnt(0) lgkmcnt(0)
    s_memrealtime s[94:95]
    s_memtime s[96:97]
    s_load_dwordx2 s[98:99], s[0:1], 96
    s_waitcnt lgkmcnt(0)
    s_add_u32 s84, s98, {WS['STAMP'][0]}
    s_addc_u32 s85, s99, 0
    s_mov_b32 s86, {WS['STAMP'][1]}
    s_mov_b32 s87, 0x00020000
    v_mov_b32 v4, s90
    v_mov_b32 v5, s94
    v_mov_b32 v6, s92
    v_mov_b32 v7, s96
    s_add_u32 s88, s88, {kid * 1024}
    s_lshl_b32 s88, s88, 8
    s_lshr_b32 s89, s89, 2
    s_add_u32 s88, s88, s89
    v_mov_b32 v3, s88
    s_mov_b64 exec, 1
    buffer_store_dwordx4 v[4:7], v3, s[84:87], 0 offen
    v_mov_b32 v8, s70
    v_mov_b32 v9, s72
    v_mov_b32 v10, s74
    v_mov_b32 v11, s76
    v_add_u32 v3, {WS['STAMP'][1]//2}, v3
    buffer_store_dwordx4 v[8:11], v3, s[84:87], 0 offen
    s_endpgm
''')
        body, n = pad_hazards(self.lines)
        acc = (vgpr + 3) // 4 * 4
        nfv = acc + agpr if agpr else vgpr
        text = [f'.text', f'.globl {self.name}', '.p2align 8', f'.type {self.name},@function', f'{self.name}:'] + body
        kd = f'''.section .rodata,"a"
.p2align 6
.amdhsa_kernel {self.name}
  .amdhsa_next_free_vgpr {nfv}
  .amdhsa_next_free_sgpr {sgpr}
  .amdhsa_accum_offset {acc}
  .amdhsa_group_segment_fixed_size 0
  .amdhsa_kernarg_size 104
  .amdhsa_user_sgpr_count 2
  .amdhsa_user_sgpr_kernarg_segment_ptr 1
  .amdhsa_system_sgpr_workgroup_id_x 1
.end_amdhsa_kernel'''
        return '\n'.join(text) + '\n' + kd + '\n'


class Queue:
    def __init__(self):
        self.q = []

    def push(self, tag):
        self.q.append(tag)

    def count_for(self, tag):
        idx = max(i for i, t in enumerate(self.q) if t == tag)
        n = len(self.q) - 1 - idx
        self.q = self.q[idx + 1:]
        return n

    def has(self, tag):
        return tag in self.q
```

```python
from asmlib import Kern
from layout import *

NG, NL, NW = 216, 128, 45
K1_GRID = NG + NL + NW

def gen_k1():
    k = Kern('k1_kernel')
    k(f'''
    s_load_dwordx4 s[4:7], s[0:1], 0
    s_load_dwordx4 s[8:11], s[0:1], 16
    s_load_dwordx4 s[12:15], s[0:1], 64
    s_load_dwordx2 s[16:17], s[0:1], 96
    v_lshrrev_b32 v1, 6, v0
    v_and_b32 v2, 63, v0
    v_readfirstlane_b32 s18, v1
    s_cmp_ge_u32 s2, {NG}
    s_cbranch_scc1 k1_not_gemv
    ''')
    k(f'''
    s_cmp_ge_u32 s18, 3
    s_cbranch_scc1 k1_end
    s_and_b32 s19, s2, 7
    s_mul_i32 s19, s19, 27
    s_lshr_b32 s20, s2, 3
    s_add_u32 s19, s19, s20            ; slab
    v_and_b32 v3, 1, v0                ; g
    v_lshrrev_b32 v4, 1, v0            ; p
    s_movk_i32 s20, 6912
    v_mul_lo_u32 v5, v4, s20
    v_lshl_add_u32 v5, v3, 4, v5       ; voff_w
    v_lshlrev_b32 v6, 1, v4            ; voff_c
    s_lshl_b32 s21, s19, 5             ; slab*32
    s_waitcnt lgkmcnt(0)
    ''')
    k.srd(24, 14, 15, 576 * 3456 * 2)
    k.srd(28, 12, 13, 1152)
    for i in range(6):
        k(f'buffer_load_ushort v{8+i}, v6, s[28:31], 0 offen offset:{i*192}')
    for i in range(6):
        k(f'buffer_load_dwordx4 v[{16+4*i}:{19+4*i}], v5, s[24:27], s21 offen')
        if i < 5:
            k(f's_add_u32 s21, s21, {96*6912}')
    k.srd(32, 16, 17, WS['MODF'][1], WS['MODF'][0])
    k.srd(36, 16, 17, WS['MODB'][1], WS['MODB'][0])
    k('s_mov_b32 s22, 0xbfb8aa3b')
    k('s_waitcnt vmcnt(6)')
    for i in range(6):
        k(f'v_lshlrev_b32 v{8+i}, 16, v{8+i}')
    for i in range(6):
        k(f'v_mul_f32 v{40+i}, s22, v{8+i}')
    for i in range(6):
        k(f'v_exp_f32 v{40+i}, v{40+i}')
    for i in range(6):
        k(f'v_add_f32 v{40+i}, 1.0, v{40+i}')
    for i in range(6):
        k(f'v_rcp_f32 v{40+i}, v{40+i}')
    for i in range(6):
        k(f'v_mul_f32 v{8+i}, v{8+i}, v{40+i}')
    for i in range(6):
        k(f'v_cvt_pk_bf16_f32 v{8+i}, v{8+i}, v{8+i}')
    for i in range(6):
        k(f'v_lshlrev_b32 v{8+i}, 16, v{8+i}')
    for i in range(6):
        k(f's_waitcnt vmcnt({5-i})')
        for j in range(4):
            w = 16 + 4 * i + j
            k(f'v_lshlrev_b32 v56, 16, v{w}')
            k(f'v_and_b32 v57, 0xffff0000, v{w}')
            if i == 0:
                k(f'v_mul_f32 v{48+2*j}, v{8+i}, v56')
                k(f'v_mul_f32 v{49+2*j}, v{8+i}, v57')
            else:
                k(f'v_fmac_f32 v{48+2*j}, v{8+i}, v56')
                k(f'v_fmac_f32 v{49+2*j}, v{8+i}, v57')
    for mod in ('quad_perm:[2,3,0,1]', 'row_ror:4', 'row_ror:8'):
        for j in range(8):
            k(f'v_add_f32_dpp v{48+j}, v{48+j}, v{48+j} {mod} row_mask:0xf bank_mask:0xf')
    k(f'''
    v_lshrrev_b32 v4, 4, v0
    v_lshlrev_b32 v4, 6, v4
    v_lshl_add_u32 v4, v3, 5, v4
    v_and_b32 v5, 14, v0
    v_cmp_eq_u32 vcc, 0, v5
    s_and_saveexec_b64 s[40:41], vcc
    ds_write_b128 v4, v[48:51]
    ds_write_b128 v4, v[52:55] offset:16
    s_mov_b64 exec, s[40:41]
    s_waitcnt lgkmcnt(0)
    s_barrier
    s_cmp_lg_u32 s18, 0
    s_cbranch_scc1 k1_end
    v_and_b32 v3, 15, v0
    v_lshlrev_b32 v4, 2, v3
    ''')
    for i in range(12):
        k(f'ds_read_b32 v{8+i}, v4 offset:{i*64}')
    k('s_waitcnt lgkmcnt(0)')
    for i in range(1, 12):
        k(f'v_add_f32 v8, v8, v{8+i}')
    k(f'''
    v_cvt_pk_bf16_f32 v8, v8, v8
    v_lshlrev_b32 v8, 16, v8
    s_cmp_lt_u32 s19, 36
    s_cbranch_scc1 k1_noadd
    s_cmp_lt_u32 s19, 72
    s_cbranch_scc1 k1_add
    s_cmp_lt_u32 s19, 144
    s_cbranch_scc1 k1_noadd
    s_cmp_ge_u32 s19, 180
    s_cbranch_scc1 k1_noadd
k1_add:
    v_add_f32 v8, 1.0, v8
    v_cvt_pk_bf16_f32 v8, v8, v8
    v_lshlrev_b32 v8, 16, v8
k1_noadd:
    v_lshrrev_b32 v9, 16, v8
    s_lshl_b32 s20, s19, 6
    s_lshl_b32 s21, s19, 5
    v_lshlrev_b32 v5, 1, v3
    v_cmp_gt_u32 vcc, 16, v0
    s_and_saveexec_b64 s[40:41], vcc
    buffer_store_dword v8, v4, s[32:35], s20 offen
    buffer_store_short v9, v5, s[36:39], s21 offen
    s_endpgm
k1_not_gemv:
    s_cmp_ge_u32 s2, {NG+NL}
    s_cbranch_scc1 k1_not_ln
    ''')
    k(f'''
    s_sub_u32 s19, s2, {NG}
    s_lshl_b32 s19, s19, 4
    v_lshrrev_b32 v3, 4, v0
    v_add_u32 v3, s19, v3
    s_movk_i32 s20, 1152
    v_mul_lo_u32 v3, v3, s20
    v_and_b32 v4, 15, v0
    v_lshl_add_u32 v3, v4, 3, v3       ; voff
    s_waitcnt lgkmcnt(0)
    ''')
    k.srd(24, 4, 5, S * D * 2)
    for c in range(9):
        k(f'buffer_load_dwordx2 v[{8+2*c}:{9+2*c}], v3, s[24:27], 0 offen offset:{c*128}')
    k.srd(28, 16, 17, WS['XN'][1], WS['XN'][0])
    for c in range(9):
        k(f's_waitcnt vmcnt({8-c})')
        for j in range(2):
            w = 8 + 2 * c + j
            k(f'v_lshlrev_b32 v{32+4*c+2*j}, 16, v{w}')
            k(f'v_and_b32 v{33+4*c+2*j}, 0xffff0000, v{w}')
    k('v_add_f32 v4, v32, v33')
    k('v_add_f32 v5, v34, v35')
    for i in range(4, 36, 2):
        k(f'v_add_f32 v4, v4, v{32+i}')
        k(f'v_add_f32 v5, v5, v{33+i}')
    k('v_add_f32 v4, v4, v5')
    for mod in ('quad_perm:[1,0,3,2]', 'quad_perm:[2,3,0,1]', 'row_ror:4', 'row_ror:8'):
        k(f'v_add_f32_dpp v4, v4, v4 {mod} row_mask:0xf bank_mask:0xf')
    import struct
    inv = struct.unpack('<I', struct.pack('<f', 1.0 / 576))[0]
    eps = struct.unpack('<I', struct.pack('<f', 1e-5))[0]
    k(f'v_mul_f32 v4, 0x{inv:08x}, v4')
    for i in range(36):
        k(f'v_sub_f32 v{32+i}, v{32+i}, v4')
    k('v_mul_f32 v4, v32, v32')
    k('v_mul_f32 v5, v33, v33')
    for i in range(2, 36, 2):
        k(f'v_fmac_f32 v4, v{32+i}, v{32+i}')
        k(f'v_fmac_f32 v5, v{33+i}, v{33+i}')
    k('v_add_f32 v4, v4, v5')
    for mod in ('quad_perm:[1,0,3,2]', 'quad_perm:[2,3,0,1]', 'row_ror:4', 'row_ror:8'):
        k(f'v_add_f32_dpp v4, v4, v4 {mod} row_mask:0xf bank_mask:0xf')
    k(f'''
    v_mov_b32 v5, 0x{eps:08x}
    v_fmac_f32 v5, 0x{inv:08x}, v4
    v_rsq_f32 v4, v5
    ''')
    for i in range(36):
        k(f'v_mul_f32 v{32+i}, v{32+i}, v4')
    for c in range(9):
        k(f'v_cvt_pk_bf16_f32 v{8+2*c}, v{32+4*c}, v{33+4*c}')
        k(f'v_cvt_pk_bf16_f32 v{9+2*c}, v{34+4*c}, v{35+4*c}')
        k(f'buffer_store_dwordx2 v[{8+2*c}:{9+2*c}], v3, s[28:31], 0 offen offset:{c*128}')
    k(f'''
    s_endpgm
k1_not_ln:
    s_cmp_ge_u32 s2, {NG+NL+NW}
    s_cbranch_scc1 k1_end
    ''')
    k(f'''
    s_sub_u32 s19, s2, {NG+NL}
    s_lshl_b32 s19, s19, 2
    s_add_u32 s19, s19, s18
    s_mul_i32 s20, s19, 7282
    s_lshr_b32 s20, s20, 16            ; nt = W / 9
    s_mul_i32 s21, s20, 9
    s_sub_u32 s21, s19, s21            ; q = W % 9
    v_and_b32 v3, 31, v2               ; rho
    v_lshrrev_b32 v4, 5, v2            ; h
    v_and_b32 v5, 19, v3
    v_and_b32 v6, 4, v3
    v_lshl_or_b32 v5, v6, 1, v5
    v_and_b32 v6, 8, v3
    v_lshrrev_b32 v6, 1, v6
    v_or_b32 v5, v5, v6                ; c
    s_waitcnt lgkmcnt(0)
    s_cmp_ge_u32 s20, 18
    s_cbranch_scc1 k1_kv
    ''')
    k.srd(24, 6, 7, D * D * 2)
    k(f'''
    s_movk_i32 s22, 1152
    s_cmp_ge_u32 s20, 16
    s_cbranch_scc1 k1_q2
    v_lshrrev_b32 v6, 4, v5
    v_mul_u32_u24 v6, 18, v6
    v_and_b32 v7, 15, v5
    v_add_u32 v6, v6, v7
    s_mul_i32 s23, s20, 36
    v_add_u32 v6, s23, v6              ; col
    s_branch k1_go
k1_q2:
    v_and_b32 v6, 7, v5
    v_lshrrev_b32 v7, 4, v5
    v_lshl_add_u32 v6, v7, 3, v6       ; r
    v_and_b32 v7, 8, v5                ; 8*hh
    v_lshrrev_b32 v8, 1, v6
    v_add_u32 v7, v7, v8
    v_mul_u32_u24 v7, 18, v7
    v_and_b32 v6, 1, v6
    v_add_u32 v6, v6, v7
    s_sub_u32 s23, s20, 16
    s_mul_i32 s23, s23, 288
    s_add_u32 s23, s23, 16
    v_add_u32 v6, s23, v6
    s_branch k1_go
k1_kv:
    s_movk_i32 s22, 36
    s_cmp_ge_u32 s20, 19
    s_cbranch_scc1 k1_v
    ''')
    k.srd(24, 8, 9, D * DH * 2)
    k(f'''
    ; c<16 -> c ; else 16 + (c&1)
    v_and_b32 v6, 1, v5
    v_add_u32 v6, 16, v6
    v_cmp_gt_u32 vcc, 16, v5
    v_cndmask_b32 v6, v6, v5, vcc
    s_branch k1_go
k1_v:
    ''')
    k.srd(24, 10, 11, D * DH * 2)
    k('v_mov_b32 v6, 0')
    for n, d in enumerate(VSLOT):
        if d > 0:
            k(f'v_cmp_eq_u32 vcc, {n}, v3')
            k(f'v_mov_b32 v7, {d}')
            k(f'v_cndmask_b32 v6, v6, v7, vcc')
    k(f'''
k1_go:
    s_lshl_b32 s23, s22, 3
    v_mul_lo_u32 v7, v4, s23
    v_lshl_add_u32 v7, v6, 1, v7
    s_lshl_b32 s28, s21, 6
    s_mul_i32 s28, s28, s22
    ''')
    for i in range(4):
        for j in range(8):
            k(f'buffer_load_ushort v{16+8*i+j}, v7, s[24:27], s28 offen')
            k(f's_add_u32 s28, s28, s22')
        if i < 3:
            k(f's_add_u32 s28, s28, s23')
    k.srd(32, 16, 17, WS['WQKV'][1], WS['WQKV'][0])
    k(f'''
    s_mul_i32 s29, s20, 36
    s_lshl_b32 s30, s21, 2
    s_add_u32 s29, s29, s30
    s_lshl_b32 s29, s29, 10
    v_lshlrev_b32 v8, 4, v2
    ''')
    for i in range(4):
        k(f's_waitcnt vmcnt({24 - 8*i + i})')
        for j in range(4):
            k(f'v_lshl_or_b32 v{48+4*i+j}, v{16+8*i+2*j+1}, 16, v{16+8*i+2*j}')
        k(f'buffer_store_dwordx4 v[{48+4*i}:{51+4*i}], v8, s[32:35], s29 offen offset:{i*1024}')
    k('''
k1_end:
    s_endpgm
    ''')
    return k.finish(vgpr=72)
```

```python
from asmlib import Kern
from layout import *
import struct, math

K2_GRID = 256
K2_BLOCK = 640
K2_HT = 36 * 1056
K2_LDS = K2_HT + 5 * 4096
QSCALE = (18 ** -0.5) * math.log2(math.e)

def f32(x): return struct.unpack('<I', struct.pack('<f', x))[0]

def gen_k2():
    k = Kern('k2_kernel')
    k(f'''
    s_cmp_ge_u32 s2, {K2_GRID}
    s_cbranch_scc1 k2_end
    s_load_dwordx2 s[16:17], s[0:1], 96
    v_lshrrev_b32 v1, 6, v0
    v_and_b32 v2, 63, v0               ; lane
    v_readfirstlane_b32 s18, v1        ; wave
    s_lshr_b32 s19, s2, 2              ; tt
    s_and_b32 s20, s2, 3               ; cg
    s_movk_i32 s3, 911
    v_mul_u32_u24 v3, s3, v0
    v_lshrrev_b32 v3, 16, v3           ; r0 = t/72
    v_mul_u32_u24 v4, 72, v3
    v_sub_u32 v4, v0, v4               ; g
    s_movk_i32 s3, 1152
    v_mul_u32_u24 v5, s3, v3
    v_lshl_add_u32 v5, v4, 4, v5
    v_lshlrev_b32 v6, 5, v4
    v_lshlrev_b32 v7, 4, v2            ; lane*16
    ; nt = 5cg + w%5 ; kh = w/5
    s_cmp_ge_u32 s18, 5
    s_cselect_b32 s21, 1, 0            ; kh
    s_mul_i32 s22, s21, 5
    s_sub_u32 s22, s18, s22            ; w%5
    s_mul_i32 s23, s20, 5
    s_add_u32 s23, s23, s22            ; nt
    s_mul_i32 s24, s19, {32*1152}
    s_mul_i32 s25, s23, 36
    s_mul_i32 s26, s21, 18
    s_add_u32 s25, s25, s26
    s_lshl_b32 s25, s25, 10
    s_waitcnt lgkmcnt(0)
    ''')
    k.srd(28, 16, 17, WS['XN'][1], WS['XN'][0])
    k.srd(32, 16, 17, WS['MODF'][1], WS['MODF'][0])
    k.srd(36, 16, 17, WS['WQKV'][1], WS['WQKV'][0])
    k('s_cmp_eq_u32 s18, 9')
    k('s_cbranch_scc1 k2_skipld')
    for i in range(4):
        k(f'buffer_load_dwordx4 v[{8+4*i}:{11+4*i}], v5, s[28:31], s24 offen')
        if i < 3:
            k(f's_add_u32 s24, s24, {8*1152}')
    k(f'''
    buffer_load_dwordx4 v[24:27], v6, s[32:35], 0 offen offset:2304
    buffer_load_dwordx4 v[28:31], v6, s[32:35], 0 offen offset:2320
    buffer_load_dwordx4 v[32:35], v6, s[32:35], 0 offen
    buffer_load_dwordx4 v[36:39], v6, s[32:35], 0 offen offset:16
k2_skipld:
    ''')
    for i in range(18):
        k(f'buffer_load_dwordx4 v[{64+4*i}:{67+4*i}], v7, s[36:39], s25 offen offset:{(i%4)*1024}')
        if i % 4 == 3:
            k(f's_add_u32 s25, s25, 4096')
    k(f'''
    s_cmp_eq_u32 s18, 9
    s_cbranch_scc1 k2_skipnorm
    s_movk_i32 s3, 528
    v_mul_u32_u24 v3, 16, v3
    v_mad_u32_u24 v3, v4, s3, v3
    s_waitcnt vmcnt(18)
    ''')
    k.stamp(0)
    for i in range(4):
        for j in range(4):
            w = 8 + 4 * i + j
            k(f'v_lshlrev_b32 v{40+2*j}, 16, v{w}')
            k(f'v_and_b32 v{41+2*j}, 0xffff0000, v{w}')
        for j in range(8):
            k(f'v_fma_f32 v{40+j}, v{40+j}, v{24+j}, v{32+j}')
        for j in range(4):
            k(f'v_cvt_pk_bf16_f32 v{48+4*(i%2)+j}, v{40+2*j}, v{41+2*j}')
        k(f'ds_write_b128 v3, v[{48+4*(i%2)}:{51+4*(i%2)}] offset:{i*128}')
    k(f'''
k2_skipnorm:
    v_lshrrev_b32 v3, 5, v2
    v_and_b32 v4, 31, v2
    s_movk_i32 s3, 528
    v_mul_u32_u24 v5, s3, v3
    v_lshl_add_u32 v5, v4, 4, v5
    s_mul_i32 s26, s21, {18*1056}
    v_add_u32 v5, s26, v5
    s_waitcnt lgkmcnt(0)
    s_barrier
    ''')
    k.stamp(1)
    NB = 6
    def mloop(swap):
        for i in range(NB):
            k(f'ds_read_b128 v[{8+4*i}:{11+4*i}], v5 offset:{i*1056}')
        for i in range(18):
            b = 8 + 4 * (i % NB)
            rem = min(NB - 1, 17 - i)
            k(f's_waitcnt vmcnt({17-i}) lgkmcnt({rem})')
            A = f'v[{64+4*i}:{67+4*i}]'; B = f'v[{b}:{b+3}]'
            if swap: A, B = B, A
            C = '0' if i == 0 else 'v[44:59]'
            k(f'v_mfma_f32_32x32x16_bf16 v[44:59], {A}, {B}, {C}')
            if i + NB < 18:
                k(f'ds_read_b128 v[{b}:{b+3}], v5 offset:{(i+NB)*1056}')
    k('s_cmp_eq_u32 s23, 19')
    k('s_cbranch_scc1 k2_vloop')
    mloop(False)
    k('s_branch k2_red')
    k('k2_vloop:')
    mloop(True)
    k('k2_red:')
    k.stamp(2)
    k(f'''
    s_lshl_b32 s26, s22, 12
    s_add_u32 s26, s26, {K2_HT}
    v_add_u32 v5, s26, v7
    s_cmp_eq_u32 s21, 0
    s_cbranch_scc1 k2_lo
    ds_write_b128 v5, v[44:47]
    ds_write_b128 v5, v[48:51] offset:1024
    ds_write_b128 v5, v[52:55] offset:2048
    ds_write_b128 v5, v[56:59] offset:3072
    s_waitcnt lgkmcnt(0)
    s_barrier
    s_endpgm
k2_lo:
    s_barrier
    ds_read_b128 v[8:11], v5
    ds_read_b128 v[12:15], v5 offset:1024
    ds_read_b128 v[16:19], v5 offset:2048
    ds_read_b128 v[20:23], v5 offset:3072
    s_mov_b32 s3, 0x{f32(QSCALE):08x}
    s_cmp_lt_u32 s23, 18
    s_cselect_b32 s3, s3, 1.0
    s_waitcnt lgkmcnt(0)
    ''')
    for j in range(16):
        k(f'v_add_f32 v{44+j}, v{44+j}, v{8+j}')
    for j in range(16):
        k(f'v_mul_f32 v{44+j}, s3, v{44+j}')
    for j in range(8):
        k(f'v_cvt_pk_bf16_f32 v{8+j}, v{44+2*j}, v{45+2*j}')
    k(f'''
    s_cmp_ge_u32 s23, 16
    s_cbranch_scc1 k2_e2
    ''')
    k.srd(28, 16, 17, WS['QF1'][1], WS['QF1'][0])
    k(f'''
    s_lshl_b32 s26, s19, 5
    s_lshl_b32 s27, s23, 1
    s_add_u32 s26, s26, s27
    s_lshl_b32 s26, s26, 10
    buffer_store_dwordx4 v[8:11], v7, s[28:31], s26 offen
    buffer_store_dwordx4 v[12:15], v7, s[28:31], s26 offen offset:1024
    s_endpgm
k2_e2:
    s_cmp_ge_u32 s23, 18
    s_cbranch_scc1 k2_e3
    ''')
    k.srd(28, 16, 17, WS['QF2'][1], WS['QF2'][0])
    k(f'''
    s_sub_u32 s26, s23, 16
    s_lshl_b32 s26, s26, 2
    s_lshl_b32 s27, s19, 3
    s_add_u32 s26, s26, s27
    s_lshl_b32 s26, s26, 9
    v_lshlrev_b32 v5, 10, v3
    v_lshl_add_u32 v5, v4, 4, v5
    buffer_store_dwordx4 v[8:11], v5, s[28:31], s26 offen
    buffer_store_dwordx4 v[12:15], v5, s[28:31], s26 offen offset:512
    s_endpgm
k2_e3:
    ''')
    k.srd(28, 16, 17, WS['KV'][1], WS['KV'][0])
    k(f'''
    s_mul_i32 s26, s19, {KVREC}
    s_cmp_eq_u32 s23, 19
    s_cbranch_scc1 k2_e4
    v_lshlrev_b32 v5, 2, v4
    buffer_store_dwordx4 v[8:11], v7, s[28:31], s26 offen
    buffer_store_dword v12, v5, s[28:31], s26 offen offset:2240
    s_endpgm
k2_e4:
    s_movk_i32 s3, 304
    v_mul_u32_u24 v5, s3, v3
    v_lshl_add_u32 v5, v4, 4, v5
    v_mov_b32 v6, 0x3f803f80
    v_cmp_eq_u32 vcc, 9, v4
    ''')
    for j in range(8):
        k(f'v_cndmask_b32 v{8+j}, v{8+j}, v6, vcc')
    k(f'''
    v_cmp_gt_u32 vcc, 19, v4
    s_and_saveexec_b64 s[40:41], vcc
    buffer_store_dwordx4 v[8:11], v5, s[28:31], s26 offen offset:1024
    buffer_store_dwordx4 v[12:15], v5, s[28:31], s26 offen offset:1632
k2_end:
    s_endpgm
    ''')
    return k.finish(vgpr=136)
```

```python
S, D, H, DH, F = 2048, 576, 32, 18, 4608
WS = {}
_off = 0
def alloc(name, nbytes, align=4096):
    global _off
    _off = (_off + align - 1) // align * align
    WS[name] = (_off, nbytes)
    _off += nbytes
KVREC = 2368
alloc('MODF', 3456 * 4)
alloc('MODB', 3456 * 2)
alloc('XN', S * D * 2)
alloc('WQKV', 20 * 36 * 1024)
alloc('QF1', 64 * 32 * 1024)
alloc('QF2', 64 * 8 * 32 * 16)
alloc('KV', 64 * KVREC)
alloc('OF', 64 * 36 * 1024)
alloc('WO', 18 * 36 * 1024)
alloc('X2F', 64 * 36 * 1024)
alloc('X2A', 64 * 36 * 1024)
alloc('STAT2', 36 * 2048 * 8)
alloc('W1', 144 * 36 * 1024)
alloc('UT', 3 * 2 * F * 4)
alloc('W2', 36 * 144 * 1024)
alloc('HF', 128 * 144 * 1024)
alloc('PART', 4 * 64 * 36 * 1024)
alloc('STAMP', 2 * 10 * 1024 * 256)
WS_TOTAL = _off
VSLOT = [0, 1, 2, 3, 12, 13, 14, 15, 17, -1, 8, 9, 10, 11, 4, 5, 6, 7, 16]
def pi(r):
    return (r & ~12) | ((r & 4) << 1) | ((r & 8) >> 1)
```

```python
import sys, importlib
sys.path.insert(0, 'gen')
from layout import *
HEADER = open('adaLN_cond__grouped_kv_mqa__dense_activation_relu__prompt.s.ref').read().split('; Override launch')[0]

def build(kernels):
    out = HEADER
    for (name, grid, block, lds, text) in kernels:
        out += f'; @launch kernel={name} grid=({grid},1,1) block=({block},1,1) lds={lds}\n'
    out += '.amdgcn_target "amdgcn-amd-amdhsa--gfx950"\n'
    seen = set()
    for (name, grid, block, lds, text) in kernels:
        if name in seen: continue
        seen.add(name)
        out += text
    return out

def all_kernels(upto=99):
    import k1
    ks = [('k1_kernel', k1.K1_GRID, 256, 1024, k1.gen_k1())]
    import os
    for name in (('k3', 'k4', 'k5', 'k6', 'k7') if os.environ.get('SPLIT') else ('k3', 'k8')):
        try:
            m = importlib.import_module(name)
        except ModuleNotFoundError:
            break
        ks.append(m.gen())
    return ks[:upto]

if __name__ == '__main__':
    out = sys.argv[1] if len(sys.argv) > 1 else 'adaLN_cond__grouped_kv_mqa__dense_activation_relu__prompt.s'
    open(out, 'w').write(build(all_kernels()))
    print('wrote', out)
```

```python
import sys
sys.path.insert(0, 'gen')
import gen
from asmlib import Kern
def empty():
    k = Kern('k9_kernel')
    k('s_endpgm')
    return ('k9_kernel', 1, 64, 0, k.finish(vgpr=8))
ks = gen.all_kernels()
e = empty()
open('v_base.s', 'w').write(gen.build(ks))
open('v_e4.s', 'w').write(gen.build(ks + [e] * 4))
open('v_e8.s', 'w').write(gen.build(ks + [e] * 8))
open('v_pre4.s', 'w').write(gen.build([e] * 4 + ks))
```

```python
import re

REG_RE = re.compile(r'^(-|abs\()?([vas])(\d+)\)?$')
RNG_RE = re.compile(r'^(-)?([vas])\[(\d+):(\d+)\]$')

TRANS = ('v_exp_', 'v_log_', 'v_rcp_', 'v_rsq_', 'v_sqrt_', 'v_sin_', 'v_cos_')


def parse_reg(tok):
    tok = tok.strip()
    m = REG_RE.match(tok)
    if m:
        return {(m.group(2), int(m.group(3)))}
    m = RNG_RE.match(tok)
    if m:
        return {(m.group(2), i) for i in range(int(m.group(3)), int(m.group(4)) + 1)}
    if tok == 'vcc':
        return {('s', 106), ('s', 107)}
    if tok == 'vcc_lo':
        return {('s', 106)}
    if tok == 'vcc_hi':
        return {('s', 107)}
    if tok == 'exec':
        return {('x', 0)}
    if tok == 'm0':
        return {('m', 0)}
    return set()


class Ins:
    __slots__ = ('text', 'op', 'defs', 'uses', 'kind', 'passes', 'srcc', 'ab', 'label', 'target', 'ws', 'dpp', 'lds', 'wide_store_data', 'sgpr_uses')

    def __init__(self, text):
        self.text = text
        self.op = None
        self.defs = set(); self.uses = set()
        self.kind = 'other'; self.passes = 0; self.srcc = set(); self.ab = set()
        self.label = None; self.target = None; self.ws = 1; self.dpp = False; self.lds = False
        self.wide_store_data = set()
        code = text.split(';')[0].strip()
        if not code or code.startswith('.'):
            self.kind = 'none'; self.ws = 0
            return
        if code.endswith(':'):
            self.kind = 'label'; self.label = code[:-1]; self.ws = 0
            return
        parts = code.split(None, 1)
        op = parts[0]; self.op = op
        rest = parts[1] if len(parts) > 1 else ''
        ops = [o.strip() for o in rest.split(',')] if rest else []
        mods = ''
        if ops:
            last = ops[-1].split(None, 1)
            ops[-1] = last[0]
            mods = last[1] if len(last) > 1 else ''
        fixed = []
        for o in ops:
            fixed.append(o.split()[0] if o else o)
        regs = [parse_reg(o) for o in fixed]
        allregs = set().union(*regs) if regs else set()
        if 'dpp' in op or 'row_' in rest or 'quad_perm' in rest or 'wave_' in rest:
            self.dpp = True
        if op == 's_nop':
            self.kind = 'nop'; self.ws = int(fixed[0], 0) + 1
        elif op in ('s_branch',) or op.startswith('s_cbranch'):
            self.kind = 'branch'; self.target = fixed[0]
        elif op == 's_endpgm':
            self.kind = 'end'
        elif op.startswith('v_mfma'):
            self.kind = 'mfma'
            self.passes = 8 if '32x32' in op else 4
            self.defs = regs[0]; self.ab = regs[1] | regs[2]; self.srcc = regs[3]
            self.uses = self.ab | self.srcc
        elif op.startswith('v_cmp'):
            self.kind = 'valu'; self.defs = set(regs[0]); self.uses = set().union(*regs[1:])
            if op.startswith('v_cmpx'):
                self.defs |= {('x', 0)}
        elif op.startswith('v_readfirstlane') or op.startswith('v_readlane'):
            self.kind = 'valu'; self.defs = regs[0]; self.uses = set().union(*regs[1:])
        elif op.startswith('v_permlane') and 'swap' in op:
            self.kind = 'valu'; self.defs = regs[0] | regs[1]; self.uses = regs[0] | regs[1]
        elif op.startswith('v_'):
            self.kind = 'trans' if op.startswith(TRANS) else 'valu'
            self.defs = set(regs[0]); self.uses = set().union(*regs[1:]) if len(regs) > 1 else set()
            if '_co_' in op:
                self.defs |= regs[1]; self.uses = set().union(*regs[2:])
            if op.startswith(('v_fmac', 'v_dot2c', 'v_pk_fmac', 'v_writelane')) or 'UNUSED_PRESERVE' in rest or self.dpp:
                self.uses |= regs[0]
            if op.startswith('v_cndmask') and len(fixed) == 3:
                self.uses |= parse_reg('vcc')
        elif op.startswith(('buffer_load', 'global_load', 'flat_load')):
            self.kind = 'vmem'
            if ' lds' in (' ' + mods) or 'load_lds' in op:
                self.lds = True; self.uses = allregs | {('m', 0)}
            else:
                self.defs = regs[0]; self.uses = set().union(*regs[1:])
                if 'd16' in op:
                    self.uses |= regs[0]
        elif op.startswith(('buffer_store', 'global_store', 'flat_store', 'buffer_atomic', 'global_atomic')):
            self.kind = 'vmem'; self.uses = allregs
            if 'x3' in op or 'x4' in op:
                self.wide_store_data = regs[0] if op.startswith('buffer') else regs[1]
        elif op.startswith('buffer_'):
            self.kind = 'vmem'
        elif op.startswith('ds_'):
            self.kind = 'ds'
            if op.startswith(('ds_read', 'ds_bpermute', 'ds_permute', 'ds_swizzle')):
                self.defs = regs[0]; self.uses = set().union(*regs[1:]) if len(regs) > 1 else set()
            else:
                self.uses = allregs
        elif op.startswith('s_'):
            self.kind = 'salu'
            if op.startswith(('s_cmp', 's_waitcnt', 's_barrier', 's_setprio', 's_sleep', 's_bitcmp')):
                self.uses = allregs
            elif regs:
                self.defs = set(regs[0]); self.uses = set().union(*regs[1:]) if len(regs) > 1 else set()
                if 'saveexec' in op:
                    self.defs |= {('x', 0)}


def vg(s):
    return {r for r in s if r[0] in 'va'}


def sg(s):
    return {r for r in s if r[0] == 's'}


def required(p, c):
    need = 0
    pv = p.kind in ('valu', 'trans')
    cv = c.kind in ('valu', 'trans')
    if pv:
        pd = vg(p.defs)
        if c.kind == 'mfma' and pd & c.uses:
            need = max(need, 2)
        if cv and c.dpp and pd & c.uses:
            need = max(need, 2)
        if cv and c.op.startswith('v_permlane') and pd & c.uses:
            need = max(need, 2)
        if cv and c.op.startswith(('v_readfirstlane', 'v_readlane')) and pd & c.uses:
            need = max(need, 1)
        if p.kind == 'trans' and (c.kind == 'valu' or c.kind in ('vmem', 'ds')) and pd & c.uses:
            need = max(need, 1)
        if ('sdwa' in p.op or 'op_sel' in p.text) and cv and pd & (c.uses | c.defs):
            need = max(need, 1)
        ps = sg(p.defs)
        if ps:
            if c.kind == 'vmem' and ps & c.uses:
                need = max(need, 5)
            if cv and ps & c.uses:
                need = max(need, 4 if c.op.startswith(('v_readlane', 'v_writelane', 'v_div_fmas')) else 2)
            if c.kind == 'salu' and ps & c.uses:
                need = max(need, 1)
            if c.kind == 'branch' and 'vcc' in c.op and ps & parse_reg('vcc'):
                need = max(need, 5)
        if ('x', 0) in p.defs:
            if c.kind == 'mfma':
                need = max(need, 4)
            if cv and (c.dpp):
                need = max(need, 5)
            if cv and c.op.startswith(('v_readfirstlane', 'v_readlane', 'v_writelane', 'v_permlane')):
                need = max(need, 4)
    if p.kind == 'mfma':
        n_ab = {4: 8, 8: 12}[p.passes]
        n_ovl = {4: 6, 8: 10}[p.passes]
        n_war = {4: 3, 8: 7}[p.passes]
        if c.kind == 'mfma':
            if p.defs & c.ab:
                need = max(need, n_ab)
            if p.defs & c.srcc:
                if not (p.defs == c.srcc and p.passes == c.passes):
                    need = max(need, n_ovl)
            elif p.defs & c.defs:
                need = max(need, n_ovl)
        elif cv or c.kind in ('vmem', 'ds'):
            if p.defs & (c.uses | c.defs):
                need = max(need, n_ab)
            if cv and p.srcc & c.defs:
                need = max(need, n_war)
    if p.kind == 'vmem' and p.wide_store_data:
        if (cv or c.kind == 'mfma') and p.wide_store_data & c.defs:
            need = max(need, 2)
        elif p.wide_store_data & c.defs:
            need = max(need, 1)
    if p.kind == 'salu' and ('m', 0) in p.defs and c.kind == 'vmem' and c.lds:
        need = max(need, 1)
    return need


MAXW = 13


def pad_hazards(lines, verbose=False):
    ins = [Ins(l) for l in lines]
    total = 0

    def maps():
        labels = {x.label: i for i, x in enumerate(ins) if x.kind == 'label'}
        br_to = {}
        for i, x in enumerate(ins):
            if x.kind == 'branch' and x.target in labels:
                br_to.setdefault(labels[x.target], []).append(i)
        return br_to
    br_to = maps()
    i = 0
    while i < len(ins):
        c = ins[i]
        if c.kind in ('none', 'label', 'nop', 'end'):
            i += 1
            continue
        worst = 0
        stack = [(i, 0)]
        seen = {}
        while stack:
            j, d = stack.pop()
            preds = []
            if j > 0:
                p = ins[j - 1]
                if not (p.kind == 'end' or (p.kind == 'branch' and p.op == 's_branch')):
                    preds.append(j - 1)
            if ins[j].kind == 'label':
                preds += br_to.get(j, [])
            for pj in preds:
                p = ins[pj]
                if p.kind not in ('none', 'label', 'nop'):
                    r = required(p, c)
                    if r > d:
                        worst = max(worst, r - d)
                nd = d + p.ws
                if nd < MAXW and seen.get(pj, 99) > nd:
                    seen[pj] = nd
                    stack.append((pj, nd))
        if worst > 0:
            ins.insert(i, Ins(f'    s_nop {worst - 1}    ; auto-pad'))
            total += 1
            if verbose:
                print('pad', worst, 'before', c.text)
            br_to = maps()
            i += 1
        i += 1
    return [x.text for x in ins], total


class Kern:
    def __init__(self, name):
        self.name = name
        self.lines = []
        self.nlab = 0

    def __call__(self, text):
        for l in text.strip('\n').split('\n'):
            l = l.strip()
            if not l:
                continue
            if l.endswith(':') or l.startswith('.'):
                self.lines.append(l)
            else:
                self.lines.append('    ' + l)

    def stamp(self, i):
        import os
        if os.environ.get('STAMP'):
            self(f's_memtime s[{64+2*i}:{65+2*i}]')

    def prefetch_code(self, names, sp, vtmp, vdst, vlane, back=False):
        n = 0
        for (kn, chunk) in names:
            L = self.lab('pc')
            self(f'''
    s_getpc_b64 s[{sp}:{sp+1}]
{L}:
    {'s_sub_u32' if back else 's_add_u32'} s{sp}, s{sp}, {(L + ' - ' + kn) if back else (kn + ' - ' + L)}
    {'s_subb_u32' if back else 's_addc_u32'} s{sp+1}, s{sp+1}, 0
    v_lshlrev_b32 v{vtmp}, 7, v{vlane}
    ''')
            if chunk:
                self(f'v_add_u32 v{vtmp}, {chunk * 8192}, v{vtmp}')
            self(f'v_min_u32 v{vtmp}, {kn}_codeend - {kn} - 4, v{vtmp}')
            self(f'global_load_dword {vdst}, v{vtmp}, s[{sp}:{sp+1}]')
            n += 1
        return n

    def lab(self, base='L'):
        self.nlab += 1
        return f'{self.name}_{base}{self.nlab}'

    def srd(self, s, lo, hi, nbytes, off=0):
        if off:
            self(f's_add_u32 s{s}, s{lo}, {off}\ns_addc_u32 s{s+1}, s{hi}, 0')
        else:
            self(f's_mov_b32 s{s}, s{lo}\ns_mov_b32 s{s+1}, s{hi}')
        self(f's_mov_b32 s{s+2}, {nbytes}\ns_mov_b32 s{s+3}, 0x00020000')

    def finish(self, vgpr, agpr=0, sgpr=102):
        import os
        if os.environ.get('STAMP'):
            from layout import WS
            kid = int(self.name[1])
            pre = ['    s_memrealtime s[90:91]', '    s_memtime s[92:93]', '    v_readfirstlane_b32 s89, v0', '    s_mov_b32 s88, s2'] + [f'    s_mov_b32 s{64+2*i}, 0' for i in range(8)]
            ex = f'{self.name}_stamp_exit'
            self.lines = pre + [(f'    s_branch {ex}' if l.strip() == 's_endpgm' else l) for l in self.lines]
            self(f'''
{ex}:
    s_mov_b64 exec, -1
    s_waitcnt vmcnt(0) lgkmcnt(0)
    s_memrealtime s[94:95]
    s_memtime s[96:97]
    s_load_dwordx2 s[98:99], s[0:1], 96
    s_waitcnt lgkmcnt(0)
    s_add_u32 s84, s98, {WS['STAMP'][0]}
    s_addc_u32 s85, s99, 0
    s_mov_b32 s86, {WS['STAMP'][1]}
    s_mov_b32 s87, 0x00020000
    v_mov_b32 v4, s90
    v_mov_b32 v5, s94
    v_mov_b32 v6, s92
    v_mov_b32 v7, s96
    s_add_u32 s88, s88, {kid * 1024}
    s_lshl_b32 s88, s88, 8
    s_lshr_b32 s89, s89, 2
    s_add_u32 s88, s88, s89
    v_mov_b32 v3, s88
    s_mov_b64 exec, 1
    buffer_store_dwordx4 v[4:7], v3, s[84:87], 0 offen
    v_mov_b32 v8, s64
    v_mov_b32 v9, s66
    v_mov_b32 v10, s68
    v_mov_b32 v11, s70
    v_mov_b32 v12, s72
    v_mov_b32 v13, s74
    v_mov_b32 v14, s76
    v_mov_b32 v15, s78
    v_add_u32 v3, {WS['STAMP'][1]//3}, v3
    buffer_store_dwordx4 v[8:11], v3, s[84:87], 0 offen
    v_add_u32 v3, {WS['STAMP'][1]//3}, v3
    buffer_store_dwordx4 v[12:15], v3, s[84:87], 0 offen
    s_endpgm
''')
        body, n = pad_hazards(self.lines)
        acc = (vgpr + 3) // 4 * 4
        nfv = acc + agpr if agpr else vgpr
        text = [f'.text', f'.globl {self.name}', '.p2align 8', f'.type {self.name},@function', f'{self.name}:'] + body + [f'{self.name}_codeend:']
        kd = f'''.section .rodata,"a"
.p2align 6
.amdhsa_kernel {self.name}
  .amdhsa_next_free_vgpr {nfv}
  .amdhsa_next_free_sgpr {sgpr}
  .amdhsa_accum_offset {acc}
  .amdhsa_group_segment_fixed_size 0
  .amdhsa_kernarg_size 104
  .amdhsa_user_sgpr_count 2
  .amdhsa_user_sgpr_kernarg_segment_ptr 1
  .amdhsa_system_sgpr_workgroup_id_x 1
.end_amdhsa_kernel'''
        return '\n'.join(text) + '\n' + kd + '\n'


class Queue:
    def __init__(self):
        self.q = []

    def push(self, tag):
        self.q.append(tag)

    def count_for(self, tag):
        idx = max(i for i, t in enumerate(self.q) if t == tag)
        n = len(self.q) - 1 - idx
        self.q = self.q[idx + 1:]
        return n

    def has(self, tag):
        return tag in self.q
```

```python
from asmlib import Kern
from layout import *
import struct, os
SPLIT = os.environ.get('SPLIT')

NW, NG, NL, NP = 48, 216, 128, 8
B_G = NW; B_L = NW + NG; B_P = NW + NG + NL
K1_GRID = B_P + NP
assert B_G % 8 == 0 and B_L % 8 == 0

def gen_k1():
    k = Kern('k1_kernel')
    k(f'''
    s_load_dwordx4 s[4:7], s[0:1], 0
    s_load_dwordx4 s[8:11], s[0:1], 16
    s_load_dwordx4 s[12:15], s[0:1], 64
    s_load_dwordx2 s[16:17], s[0:1], 96
    v_lshrrev_b32 v1, 6, v0
    v_and_b32 v2, 63, v0
    v_readfirstlane_b32 s18, v1
    s_cmp_ge_u32 s2, {B_L}
    s_cbranch_scc1 k1_ln
    s_cmp_lt_u32 s2, {B_G}
    s_cbranch_scc1 k1_rel
    ''')
    k(f'''
    s_cmp_ge_u32 s18, 3
    s_cbranch_scc1 k1_end
    s_sub_u32 s3, s2, {B_G}
    s_and_b32 s19, s3, 7
    s_mul_i32 s19, s19, 27
    s_lshr_b32 s20, s3, 3
    s_add_u32 s19, s19, s20            ; slab
    v_and_b32 v3, 1, v0                ; g
    v_lshrrev_b32 v4, 1, v0            ; p
    v_mul_u32_u24 v5, 6912, v4
    v_lshl_add_u32 v5, v3, 4, v5       ; voff_w
    v_lshlrev_b32 v6, 1, v4            ; voff_c
    s_lshl_b32 s21, s19, 5             ; slab*32
    s_waitcnt lgkmcnt(0)
    ''')
    k.stamp(0)
    k.srd(24, 14, 15, 576 * 3456 * 2)
    k.srd(28, 12, 13, 1152)
    for i in range(6):
        k(f'buffer_load_ushort v{8+i}, v6, s[28:31], 0 offen offset:{i*192}')
    for i in range(6):
        k(f'buffer_load_dwordx4 v[{16+4*i}:{19+4*i}], v5, s[24:27], s21 offen')
        if i < 5:
            k(f's_add_u32 s21, s21, {96*6912}')
    k.srd(32, 16, 17, WS['MODF'][1], WS['MODF'][0])
    k.srd(36, 16, 17, WS['MODB'][1], WS['MODB'][0])
    k('s_mov_b32 s22, 0xbfb8aa3b')
    k('s_waitcnt vmcnt(6)')
    k.stamp(1)
    for i in range(6):
        k(f'v_lshlrev_b32 v{8+i}, 16, v{8+i}')
    for i in range(6):
        k(f'v_mul_f32 v{40+i}, s22, v{8+i}')
    for i in range(6):
        k(f'v_exp_f32 v{40+i}, v{40+i}')
    for i in range(6):
        k(f'v_add_f32 v{40+i}, 1.0, v{40+i}')
    for i in range(6):
        k(f'v_rcp_f32 v{40+i}, v{40+i}')
    for i in range(6):
        k(f'v_mul_f32 v{8+i}, v{8+i}, v{40+i}')
    for i in range(6):
        k(f'v_cvt_pk_bf16_f32 v{8+i}, v{8+i}, v{8+i}')
    for i in range(6):
        k(f'v_lshlrev_b32 v{8+i}, 16, v{8+i}')
    k(f'''
    v_lshrrev_b32 v4, 4, v0
    v_lshlrev_b32 v4, 6, v4
    v_lshl_add_u32 v4, v3, 5, v4
    v_and_b32 v5, 14, v0
    v_cmp_eq_u32 vcc, 0, v5
    s_mov_b32 s23, 0xffff0000
    ''')
    for i in range(6):
        k(f's_waitcnt vmcnt({5-i})')
        for j in range(4):
            w = 16 + 4 * i + j
            k(f'v_lshlrev_b32 v{56+2*(j%2)}, 16, v{w}')
            k(f'v_and_b32 v{57+2*(j%2)}, s23, v{w}')
            if i == 0:
                k(f'v_mul_f32 v{48+2*j}, v{8+i}, v{56+2*(j%2)}')
                k(f'v_mul_f32 v{49+2*j}, v{8+i}, v{57+2*(j%2)}')
            else:
                k(f'v_fmac_f32 v{48+2*j}, v{8+i}, v{56+2*(j%2)}')
                k(f'v_fmac_f32 v{49+2*j}, v{8+i}, v{57+2*(j%2)}')
    k.stamp(2)
    for mod in ('quad_perm:[2,3,0,1]', 'row_ror:4', 'row_ror:8'):
        for j in range(8):
            k(f'v_add_f32_dpp v{48+j}, v{48+j}, v{48+j} {mod} row_mask:0xf bank_mask:0xf')
    k(f'''
    s_and_saveexec_b64 s[40:41], vcc
    ds_write_b128 v4, v[48:51]
    ds_write_b128 v4, v[52:55] offset:16
    s_mov_b64 exec, s[40:41]
    v_and_b32 v3, 15, v0
    v_lshlrev_b32 v4, 2, v3
    s_waitcnt lgkmcnt(0)
    s_barrier
    s_cmp_lg_u32 s18, 0
    s_cbranch_scc1 k1_end
    ''')
    for i in range(6):
        k(f'ds_read2_b32 v[{8+2*i}:{9+2*i}], v4 offset0:{i*32} offset1:{i*32+16}')
    k(f'''
    s_lshl_b32 s20, s19, 6
    s_lshl_b32 s21, s19, 5
    v_lshlrev_b32 v5, 1, v3
    s_mul_i32 s22, s19, 1821
    s_lshr_b32 s22, s22, 16
    s_mov_b32 s23, 0x12
    s_bitcmp1_b32 s23, s22
    s_cselect_b32 s22, 1.0, 0
    v_cmp_gt_u32 vcc, 16, v0
    s_waitcnt lgkmcnt(0)
    ''')
    for i in range(6):
        k(f'v_add_f32 v{8+2*i}, v{8+2*i}, v{9+2*i}')
    k(f'''
    v_add_f32 v8, v8, v10
    v_add_f32 v12, v12, v14
    v_add_f32 v16, v16, v18
    v_add_f32 v8, v8, v12
    v_add_f32 v8, v8, v16
    v_cvt_pk_bf16_f32 v8, v8, v8
    v_lshlrev_b32 v8, 16, v8
    v_add_f32 v8, s22, v8
    v_cvt_pk_bf16_f32 v9, v8, v8
    v_lshlrev_b32 v8, 16, v9
    s_and_saveexec_b64 s[40:41], vcc
    buffer_store_dword v8, v4, s[32:35], s20 offen
    buffer_store_short v9, v5, s[36:39], s21 offen
    s_endpgm
    ''')
    t = [d if d >= 0 else 0 for d in VSLOT] + [0] * (24 - len(VSLOT))
    lo = sum(t[i] << (5 * i) for i in range(12)); hi = sum(t[12 + i] << (5 * i) for i in range(12))
    k(f'''
k1_rel:
    s_lshl_b32 s19, s2, 2
    s_add_u32 s19, s19, s18
    s_cmp_ge_u32 s19, 180
    s_cbranch_scc1 k1_end
    s_mul_i32 s20, s19, 7282
    s_lshr_b32 s20, s20, 16            ; nt = W / 9
    s_mul_i32 s21, s20, 9
    s_sub_u32 s21, s19, s21            ; q = W % 9
    v_and_b32 v3, 31, v2               ; rho
    v_lshrrev_b32 v4, 5, v2            ; h
    v_and_b32 v5, 19, v3
    v_and_b32 v6, 4, v3
    v_lshl_or_b32 v5, v6, 1, v5
    v_and_b32 v6, 8, v3
    v_lshrrev_b32 v6, 1, v6
    v_or_b32 v5, v5, v6
    s_mov_b32 s27, 0x00020000
    s_cmp_ge_u32 s20, 18
    s_cbranch_scc1 k1_kv
    s_movk_i32 s22, 1152
    s_mov_b32 s26, {D*D*2}
    s_cmp_ge_u32 s20, 16
    s_cbranch_scc1 k1_q2
    v_lshrrev_b32 v6, 4, v5
    v_lshl_add_u32 v6, v6, 1, v5
    s_mul_i32 s23, s20, 36
    v_add_u32 v6, s23, v6              ; col
    s_waitcnt lgkmcnt(0)
    s_mov_b32 s24, s6
    s_mov_b32 s25, s7
    s_branch k1_go
k1_q2:
    v_and_b32 v6, 7, v5
    v_lshrrev_b32 v7, 4, v5
    v_lshl_add_u32 v6, v7, 3, v6       ; r
    v_and_b32 v7, 8, v5                ; 8*hh
    v_lshrrev_b32 v8, 1, v6
    v_add_u32 v7, v7, v8
    v_mul_u32_u24 v7, 18, v7
    v_and_b32 v6, 1, v6
    v_add_u32 v6, v6, v7
    s_mul_i32 s23, s20, 288
    s_sub_u32 s23, s23, {16*288 - 16}
    v_add_u32 v6, s23, v6
    s_waitcnt lgkmcnt(0)
    s_mov_b32 s24, s6
    s_mov_b32 s25, s7
    s_branch k1_go
k1_kv:
    s_movk_i32 s22, 36
    s_mov_b32 s26, {D*DH*2}
    s_cmp_ge_u32 s20, 19
    s_cbranch_scc1 k1_v
    ; c<16 -> c ; else 16 + (c&1)
    v_and_b32 v6, 17, v5
    v_cmp_gt_u32 vcc, 16, v5
    s_waitcnt lgkmcnt(0)
    s_mov_b32 s24, s8
    s_mov_b32 s25, s9
    v_cndmask_b32 v6, v6, v5, vcc
    s_branch k1_go
k1_v:
    v_mov_b32 v8, 0x{lo & 0xffffffff:08x}
    v_mov_b32 v9, 0x{lo >> 32:08x}
    v_mov_b32 v10, 0x{hi & 0xffffffff:08x}
    v_mov_b32 v11, 0x{hi >> 32:08x}
    v_cmp_le_u32 vcc, 12, v3
    v_subrev_u32 v6, 12, v3
    v_min_u32 v6, 11, v6
    v_cndmask_b32 v6, v3, v6, vcc
    v_cndmask_b32 v8, v8, v10, vcc
    v_cndmask_b32 v9, v9, v11, vcc
    v_mul_u32_u24 v6, 5, v6
    v_lshrrev_b64 v[8:9], v6, v[8:9]
    v_and_b32 v6, 31, v8
    s_waitcnt lgkmcnt(0)
    s_mov_b32 s24, s10
    s_mov_b32 s25, s11
k1_go:
    s_lshl_b32 s23, s22, 3
    v_mul_u32_u24 v7, s23, v4
    v_lshl_add_u32 v7, v6, 1, v7
    s_lshl_b32 s28, s21, 6
    s_mul_i32 s28, s28, s22
    ''')
    for i in range(4):
        for j in range(8):
            k(f'buffer_load_ushort v{16+8*i+j}, v7, s[24:27], s28 offen')
            k(f's_add_u32 s28, s28, s22')
        if i < 3:
            k(f's_add_u32 s28, s28, s23')
    k.stamp(1)
    k.srd(32, 16, 17, WS['WQKV'][1], WS['WQKV'][0])
    k(f'''
    s_mul_i32 s29, s20, 36
    s_lshl_b32 s30, s21, 2
    s_add_u32 s29, s29, s30
    s_lshl_b32 s29, s29, 10
    v_lshlrev_b32 v8, 4, v2
    ''')
    for i in range(4):
        k(f's_waitcnt vmcnt({24 - 8*i + i})')
        for j in range(4):
            k(f'v_lshl_or_b32 v{48+4*i+j}, v{16+8*i+2*j+1}, 16, v{16+8*i+2*j}')
        k(f'buffer_store_dwordx4 v[{48+4*i}:{51+4*i}], v8, s[32:35], s29 offen offset:{i*1024}')
    k.stamp(2)
    k('s_endpgm')
    k(f'''
k1_ln:
    s_cmp_ge_u32 s2, {B_P}
    s_cbranch_scc1 k1_warm
    s_sub_u32 s19, s2, {B_L}
    s_and_b32 s20, s19, 7
    s_lshl_b32 s20, s20, 4
    s_lshr_b32 s19, s19, 3
    s_add_u32 s19, s19, s20
    s_mul_i32 s19, s19, {16*1152}
    v_lshrrev_b32 v3, 4, v0
    v_mul_u32_u24 v3, 1152, v3
    v_and_b32 v4, 15, v0
    v_lshl_add_u32 v3, v4, 3, v3       ; voff
    s_waitcnt lgkmcnt(0)
    ''')
    k.stamp(0)
    k.srd(24, 4, 5, S * D * 2)
    for c in range(9):
        k(f'buffer_load_dwordx2 v[{8+2*c}:{9+2*c}], v3, s[24:27], s19 offen offset:{c*128}')
    k.srd(28, 16, 17, WS['XN'][1], WS['XN'][0])
    k('s_mov_b32 s23, 0xffff0000')
    for c in range(9):
        k(f's_waitcnt vmcnt({8-c})')
        for j in range(2):
            w = 8 + 2 * c + j
            k(f'v_lshlrev_b32 v{32+4*c+2*j}, 16, v{w}')
            k(f'v_and_b32 v{33+4*c+2*j}, s23, v{w}')
    k.stamp(1)
    k('v_add_f32 v4, v32, v33')
    k('v_add_f32 v5, v34, v35')
    for i in range(4, 36, 2):
        k(f'v_add_f32 v4, v4, v{32+i}')
        k(f'v_add_f32 v5, v5, v{33+i}')
    k('v_add_f32 v4, v4, v5')
    for mod in ('quad_perm:[1,0,3,2]', 'quad_perm:[2,3,0,1]', 'row_ror:4', 'row_ror:8'):
        k(f'v_add_f32_dpp v4, v4, v4 {mod} row_mask:0xf bank_mask:0xf')
    inv = struct.unpack('<I', struct.pack('<f', 1.0 / 576))[0]
    eps = struct.unpack('<I', struct.pack('<f', 1e-5))[0]
    k(f'v_mul_f32 v4, 0x{inv:08x}, v4')
    for i in range(36):
        k(f'v_sub_f32 v{32+i}, v{32+i}, v4')
    k('v_mul_f32 v4, v32, v32')
    k('v_mul_f32 v5, v33, v33')
    for i in range(2, 36, 2):
        k(f'v_fmac_f32 v4, v{32+i}, v{32+i}')
        k(f'v_fmac_f32 v5, v{33+i}, v{33+i}')
    k('v_add_f32 v4, v4, v5')
    for mod in ('quad_perm:[1,0,3,2]', 'quad_perm:[2,3,0,1]', 'row_ror:4', 'row_ror:8'):
        k(f'v_add_f32_dpp v4, v4, v4 {mod} row_mask:0xf bank_mask:0xf')
    k(f'''
    v_mov_b32 v5, 0x{eps:08x}
    v_fmac_f32 v5, 0x{inv:08x}, v4
    v_rsq_f32 v4, v5
    ''')
    for i in range(36):
        k(f'v_mul_f32 v{32+i}, v{32+i}, v4')
    k.stamp(2)
    for c in range(9):
        k(f'v_cvt_pk_bf16_f32 v{8+2*c}, v{32+4*c}, v{33+4*c}')
        k(f'v_cvt_pk_bf16_f32 v{9+2*c}, v{34+4*c}, v{35+4*c}')
        k(f'buffer_store_dwordx2 v[{8+2*c}:{9+2*c}], v3, s[28:31], s19 offen offset:{c*128}')
    k(f'''
    s_endpgm
k1_warm:
    s_cmp_ge_u32 s2, {K1_GRID}
    s_cbranch_scc1 k1_end
    ''')
    k('s_cmp_lg_u32 s18, 0')
    k('s_cbranch_scc1 k1_warm2')
    k.prefetch_code([('k2_kernel', 0), ('k3_kernel', 0)] + ([('k4_kernel', 0), ('k7_kernel', 0)] if SPLIT else [('k8_kernel', 0)]), 24, 3, 'v8', 2)
    k('s_endpgm')
    k('k1_warm2:')
    k('s_cmp_lg_u32 s18, 1')
    k('s_cbranch_scc1 k1_warm3')
    k.prefetch_code([('k5_kernel', 0), ('k5_kernel', 1), ('k6_kernel', 0), ('k6_kernel', 1)] if SPLIT else [('k8_kernel', c) for c in (1, 2, 3, 4)], 24, 3, 'v8', 2)
    k('s_endpgm')
    k(f'''
k1_warm3:
    s_cmp_lg_u32 s18, 2
    s_cbranch_scc1 k1_zero
    s_load_dwordx2 s[44:45], s[0:1], 32
    s_load_dwordx4 s[48:51], s[0:1], 48
    s_load_dwordx2 s[52:53], s[0:1], 80
    v_lshlrev_b32 v3, 20, v2
    s_waitcnt lgkmcnt(0)
    ''')
    k.srd(24, 16, 17, WS_USED)
    k('buffer_load_dword v8, v3, s[24:27], 0 offen')
    k.srd(28, 44, 45, D * D * 2)
    k('buffer_load_dword v9, v3, s[28:31], 0 offen')
    k.srd(32, 48, 49, D * F * 2)
    k('buffer_load_dword v10, v3, s[32:35], 0 offen')
    k.srd(36, 50, 51, D * F * 2)
    k('buffer_load_dword v11, v3, s[36:39], 0 offen')
    k.srd(40, 52, 53, S * D * 2)
    k('buffer_load_dword v12, v3, s[40:43], 0 offen')
    k('s_endpgm')
    k(f'''
k1_zero:
    s_cmp_lg_u32 s2, {B_P}
    s_cbranch_scc1 k1_end
    v_lshlrev_b32 v3, 7, v2
    v_mov_b32 v4, 0
    s_mov_b32 s3, 0
    s_waitcnt lgkmcnt(0)
    ''')
    k.srd(24, 16, 17, WS['FLAGS'][1], WS['FLAGS'][0])
    for i in range(6):
        k('buffer_store_dword v4, v3, s[24:27], s3 offen')
        k('s_add_u32 s3, s3, 8192')
    k('''
k1_end:
    s_endpgm
    ''')
    return k.finish(vgpr=72)
```

```python
from asmlib import Kern
from layout import *
import struct, math

K2_GRID = 256
K2_BLOCK = 640
K2_HT = 36 * 1056
K2_LDS = K2_HT + 5 * 4096
QSCALE = (18 ** -0.5) * math.log2(math.e)

def f32(x): return struct.unpack('<I', struct.pack('<f', x))[0]

def gen_k2():
    k = Kern('k2_kernel')
    k(f'''
    s_cmp_ge_u32 s2, {K2_GRID}
    s_cbranch_scc1 k2_end
    s_load_dwordx2 s[16:17], s[0:1], 96
    v_lshrrev_b32 v1, 6, v0
    v_and_b32 v2, 63, v0               ; lane
    v_readfirstlane_b32 s18, v1        ; wave
    s_and_b32 s19, s2, 7
    s_lshl_b32 s19, s19, 3
    s_lshr_b32 s20, s2, 5
    s_add_u32 s19, s19, s20            ; tt = 8x + (i>>2)
    s_lshr_b32 s20, s2, 3
    s_and_b32 s20, s20, 3              ; cg
    s_movk_i32 s3, 911
    v_mul_u32_u24 v3, s3, v0
    v_lshrrev_b32 v3, 16, v3           ; r0 = t/72
    v_mul_u32_u24 v4, 72, v3
    v_sub_u32 v4, v0, v4               ; g
    s_movk_i32 s3, 1152
    v_mul_u32_u24 v5, s3, v3
    v_lshl_add_u32 v5, v4, 4, v5
    v_lshlrev_b32 v6, 4, v4
    v_lshlrev_b32 v7, 4, v2            ; lane*16
    ; nt = 5cg + w%5 ; kh = w/5
    s_cmp_ge_u32 s18, 5
    s_cselect_b32 s21, 1, 0            ; kh
    s_mul_i32 s22, s21, 5
    s_sub_u32 s22, s18, s22            ; w%5
    s_mul_i32 s23, s20, 5
    s_add_u32 s23, s23, s22            ; nt
    s_mul_i32 s24, s19, {32*1152}
    s_mul_i32 s25, s23, 36
    s_mul_i32 s26, s21, 18
    s_add_u32 s25, s25, s26
    s_lshl_b32 s25, s25, 10
    s_waitcnt lgkmcnt(0)
    ''')
    k.srd(28, 16, 17, WS['XN'][1], WS['XN'][0])
    k.srd(32, 16, 17, WS['MODB'][1], WS['MODB'][0])
    k.srd(36, 16, 17, WS['WQKV'][1], WS['WQKV'][0])
    k('s_cmp_eq_u32 s18, 9')
    k('s_cbranch_scc1 k2_skipld')
    for i in range(4):
        k(f'buffer_load_dwordx4 v[{8+4*i}:{11+4*i}], v5, s[28:31], s24 offen')
        if i < 3:
            k(f's_add_u32 s24, s24, {8*1152}')
    k(f'''
    buffer_load_dwordx4 v[56:59], v6, s[32:35], 0 offen offset:1152
    buffer_load_dwordx4 v[60:63], v6, s[32:35], 0 offen
k2_skipld:
    s_barrier
    ''')
    for i in range(18):
        k(f'buffer_load_dwordx4 v[{64+4*i}:{67+4*i}], v7, s[36:39], s25 offen offset:{(i%4)*1024}')
        if i % 4 == 3:
            k(f's_add_u32 s25, s25, 4096')
    k(f'''
    s_cmp_eq_u32 s18, 9
    s_cbranch_scc1 k2_skipnorm
    s_movk_i32 s3, 528
    v_mul_u32_u24 v3, 16, v3
    v_mad_u32_u24 v3, v4, s3, v3
    s_mov_b32 s3, 0xffff0000
    s_waitcnt vmcnt(18)
    ''')
    k.stamp(0)
    for j in range(8):
        k(f'v_lshlrev_b32 v{24+2*j}, 16, v{56+j}')
        k(f'v_and_b32 v{25+2*j}, s3, v{56+j}')
    for i in range(4):
        for j in range(4):
            w = 8 + 4 * i + j
            k(f'v_lshlrev_b32 v{40+2*j}, 16, v{w}')
            k(f'v_and_b32 v{41+2*j}, s3, v{w}')
        for j in range(8):
            k(f'v_fma_f32 v{40+j}, v{40+j}, v{24+j}, v{32+j}')
        for j in range(4):
            k(f'v_cvt_pk_bf16_f32 v{48+4*(i%2)+j}, v{40+2*j}, v{41+2*j}')
        k(f'ds_write_b128 v3, v[{48+4*(i%2)}:{51+4*(i%2)}] offset:{i*128}')
    k(f'''
k2_skipnorm:
    v_lshrrev_b32 v3, 5, v2
    v_and_b32 v4, 31, v2
    s_movk_i32 s3, 528
    v_mul_u32_u24 v5, s3, v3
    v_lshl_add_u32 v5, v4, 4, v5
    s_mul_i32 s26, s21, {18*1056}
    v_add_u32 v5, s26, v5
    s_waitcnt lgkmcnt(0)
    s_barrier
    ''')
    k.stamp(1)
    NB = 6
    def mloop(swap):
        for i in range(NB):
            k(f'ds_read_b128 v[{8+4*i}:{11+4*i}], v5 offset:{i*1056}')
        for i in range(18):
            b = 8 + 4 * (i % NB)
            rem = min(NB - 1, 17 - i)
            k(f's_waitcnt vmcnt({17-i}) lgkmcnt({rem})')
            A = f'v[{64+4*i}:{67+4*i}]'; B = f'v[{b}:{b+3}]'
            if swap: A, B = B, A
            C = '0' if i == 0 else 'v[44:59]'
            k(f'v_mfma_f32_32x32x16_bf16 v[44:59], {A}, {B}, {C}')
            if i + NB < 18:
                k(f'ds_read_b128 v[{b}:{b+3}], v5 offset:{(i+NB)*1056}')
    k('s_cmp_eq_u32 s23, 19')
    k('s_cbranch_scc1 k2_vloop')
    mloop(False)
    k('s_branch k2_red')
    k('k2_vloop:')
    mloop(True)
    k('k2_red:')
    k.stamp(2)
    k(f'''
    s_lshl_b32 s26, s22, 12
    s_add_u32 s26, s26, {K2_HT}
    v_add_u32 v5, s26, v7
    s_cmp_eq_u32 s21, 0
    s_cbranch_scc1 k2_lo
    ds_write_b128 v5, v[44:47]
    ds_write_b128 v5, v[48:51] offset:1024
    ds_write_b128 v5, v[52:55] offset:2048
    ds_write_b128 v5, v[56:59] offset:3072
    s_waitcnt lgkmcnt(0)
    s_barrier
    s_endpgm
k2_lo:
    s_barrier
    ds_read_b128 v[8:11], v5
    ds_read_b128 v[12:15], v5 offset:1024
    ds_read_b128 v[16:19], v5 offset:2048
    ds_read_b128 v[20:23], v5 offset:3072
    s_mov_b32 s3, 0x{f32(QSCALE):08x}
    s_cmp_lt_u32 s23, 18
    s_cselect_b32 s3, s3, 1.0
    s_waitcnt lgkmcnt(0)
    ''')
    for j in range(16):
        k(f'v_add_f32 v{44+j}, v{44+j}, v{8+j}')
    for j in range(16):
        k(f'v_mul_f32 v{44+j}, s3, v{44+j}')
    for j in range(8):
        k(f'v_cvt_pk_bf16_f32 v{8+j}, v{44+2*j}, v{45+2*j}')
    k(f'''
    s_cmp_ge_u32 s23, 16
    s_cbranch_scc1 k2_e2
    ''')
    k.srd(28, 16, 17, WS['QF1'][1], WS['QF1'][0])
    k(f'''
    s_lshl_b32 s26, s19, 5
    s_lshl_b32 s27, s23, 1
    s_add_u32 s26, s26, s27
    s_lshl_b32 s26, s26, 10
    buffer_store_dwordx4 v[8:11], v7, s[28:31], s26 offen
    buffer_store_dwordx4 v[12:15], v7, s[28:31], s26 offen offset:1024
    s_endpgm
k2_e2:
    s_cmp_ge_u32 s23, 18
    s_cbranch_scc1 k2_e3
    ''')
    k.srd(28, 16, 17, WS['QF2'][1], WS['QF2'][0])
    k(f'''
    s_sub_u32 s26, s23, 16
    s_lshl_b32 s26, s26, 2
    s_lshl_b32 s27, s19, 3
    s_add_u32 s26, s26, s27
    s_lshl_b32 s26, s26, 9
    v_lshlrev_b32 v5, 10, v3
    v_lshl_add_u32 v5, v4, 4, v5
    buffer_store_dwordx4 v[8:11], v5, s[28:31], s26 offen
    buffer_store_dwordx4 v[12:15], v5, s[28:31], s26 offen offset:512
    s_endpgm
k2_e3:
    ''')
    k.srd(28, 16, 17, WS['KV'][1], WS['KV'][0])
    k(f'''
    s_mul_i32 s26, s19, {KVREC}
    s_cmp_eq_u32 s23, 19
    s_cbranch_scc1 k2_e4
    v_lshlrev_b32 v5, 2, v4
    buffer_store_dwordx4 v[8:11], v7, s[28:31], s26 offen
    buffer_store_dword v12, v5, s[28:31], s26 offen offset:{K2OFF}
    s_endpgm
k2_e4:
    v_mul_u32_u24 v5, {VH}, v3
    v_lshl_add_u32 v5, v4, 4, v5
    v_mov_b32 v6, 0x3f803f80
    v_cmp_eq_u32 vcc, 10, v4
    v_subrev_u32 v7, 9, v4
    v_cndmask_b32 v6, v6, 0, vcc
    v_cmp_gt_u32 vcc, 2, v7
    ''')
    for j in range(8):
        k(f'v_cndmask_b32 v{8+j}, v{8+j}, v6, vcc')
    k(f'''
    v_cmp_gt_u32 vcc, 20, v4
    s_and_saveexec_b64 s[40:41], vcc
    buffer_store_dwordx4 v[8:11], v5, s[28:31], s26 offen offset:1024
    buffer_store_dwordx4 v[12:15], v5, s[28:31], s26 offen offset:{1024+2*VH}
k2_end:
    s_endpgm
    ''')
    return k.finish(vgpr=136)
```

```python
S, D, H, DH, F = 2048, 576, 32, 18, 4608
WS = {}
_off = 0
def alloc(name, nbytes, align=4096):
    global _off
    _off = (_off + align - 1) // align * align
    WS[name] = (_off, nbytes)
    _off += nbytes
VH = 320
KVREC = 1024 + 4 * VH + 128
K2OFF = 1024 + 4 * VH
alloc('MODF', 3456 * 4)
alloc('MODB', 3456 * 2)
alloc('UT', 2 * F * 4)
alloc('FLAGS', 448 * 128)
KVFLAG = 384 * 128
alloc('STAT2', 12 * 2048 * 8)
alloc('KV', 64 * KVREC)
alloc('QF2', 64 * 8 * 32 * 16)
alloc('WQKV', 20 * 36 * 1024)
alloc('WO', 18 * 36 * 1024)
alloc('XN', S * D * 2)
alloc('QF1', 64 * 32 * 1024)
alloc('OF', 64 * 36 * 1024)
alloc('X2F', 64 * 36 * 1024)
alloc('X2A', 64 * 36 * 1024)
alloc('W1', 144 * 36 * 1024)
alloc('W2', 36 * 144 * 1024)
alloc('HF', 128 * 144 * 1024)
alloc('PART', 4 * 64 * 36 * 1024)
WS_USED = _off
alloc('STAMP', 3 * 10 * 1024 * 256)
WS_TOTAL = _off
VSLOT = [0, 1, 2, 3, 12, 13, 14, 15, 17, -1, -2, 8, 9, 10, 11, 4, 5, 6, 7, 16]
def pi(r):
    return (r & ~12) | ((r & 4) << 1) | ((r & 8) >> 1)
W1PASS = (3, 2, 2, 2)
PS = [sum(W1PASS[:i]) for i in range(len(W1PASS) + 1)]
def pass_of(p): return max(i for i in range(len(W1PASS)) if PS[i] <= p)
def kappa(fsl, p):
    i = pass_of(p)
    return 4 * PS[i] + fsl * W1PASS[i] + (p - PS[i])
NFLAG = 24
```

```python
from asmlib import Kern
from layout import *
import struct, os
SPLIT = os.environ.get('SPLIT')

NW, NG, NL, NP = 48, 216, 128, 8
B_G = NW; B_L = NW + NG; B_P = NW + NG + NL
K1_GRID = B_P + NP
assert B_G % 8 == 0 and B_L % 8 == 0

def gen_k1():
    k = Kern('k1_kernel')
    k(f'''
    s_load_dwordx4 s[4:7], s[0:1], 0
    s_load_dwordx4 s[8:11], s[0:1], 16
    s_load_dwordx4 s[12:15], s[0:1], 64
    s_load_dwordx2 s[16:17], s[0:1], 96
    v_lshrrev_b32 v1, 6, v0
    v_and_b32 v2, 63, v0
    v_readfirstlane_b32 s18, v1
    s_cmp_ge_u32 s2, {B_L}
    s_cbranch_scc1 k1_ln
    s_cmp_lt_u32 s2, {B_G}
    s_cbranch_scc1 k1_rel
    ''')
    k(f'''
    s_cmp_ge_u32 s18, 3
    s_cbranch_scc1 k1_end
    s_sub_u32 s3, s2, {B_G}
    s_and_b32 s19, s3, 7
    s_mul_i32 s19, s19, 27
    s_lshr_b32 s20, s3, 3
    s_add_u32 s19, s19, s20            ; slab
    v_and_b32 v3, 1, v0                ; g
    v_lshrrev_b32 v4, 1, v0            ; p
    v_mul_u32_u24 v5, 6912, v4
    v_lshl_add_u32 v5, v3, 4, v5       ; voff_w
    v_lshlrev_b32 v6, 1, v4            ; voff_c
    s_lshl_b32 s21, s19, 5             ; slab*32
    s_waitcnt lgkmcnt(0)
    ''')
    k.stamp(0)
    k.srd(24, 14, 15, 576 * 3456 * 2)
    k.srd(28, 12, 13, 1152)
    for i in range(6):
        k(f'buffer_load_ushort v{8+i}, v6, s[28:31], 0 offen offset:{i*192}')
    for i in range(6):
        k(f'buffer_load_dwordx4 v[{16+4*i}:{19+4*i}], v5, s[24:27], s21 offen')
        if i < 5:
            k(f's_add_u32 s21, s21, {96*6912}')
    k.srd(32, 16, 17, WS['MODF'][1], WS['MODF'][0])
    k.srd(36, 16, 17, WS['MODB'][1], WS['MODB'][0])
    k('buffer_load_dword v70, v6, s[32:35], 0 offen')
    k('s_mov_b32 s22, 0xbfb8aa3b')
    k('s_waitcnt vmcnt(7)')
    k.stamp(1)
    for i in range(6):
        k(f'v_lshlrev_b32 v{8+i}, 16, v{8+i}')
    for i in range(6):
        k(f'v_mul_f32 v{40+i}, s22, v{8+i}')
    for i in range(6):
        k(f'v_exp_f32 v{40+i}, v{40+i}')
    for i in range(6):
        k(f'v_add_f32 v{40+i}, 1.0, v{40+i}')
    for i in range(6):
        k(f'v_rcp_f32 v{40+i}, v{40+i}')
    for i in range(6):
        k(f'v_mul_f32 v{8+i}, v{8+i}, v{40+i}')
    for i in range(6):
        k(f'v_cvt_pk_bf16_f32 v{8+i}, v{8+i}, v{8+i}')
    for i in range(6):
        k(f'v_lshlrev_b32 v{8+i}, 16, v{8+i}')
    k(f'''
    v_lshrrev_b32 v4, 4, v0
    v_lshlrev_b32 v4, 6, v4
    v_lshl_add_u32 v4, v3, 5, v4
    v_and_b32 v5, 14, v0
    v_cmp_eq_u32 vcc, 0, v5
    s_mov_b32 s23, 0xffff0000
    ''')
    for i in range(6):
        k(f's_waitcnt vmcnt({6-i})')
        for j in range(4):
            w = 16 + 4 * i + j
            k(f'v_lshlrev_b32 v{56+2*(j%2)}, 16, v{w}')
            k(f'v_and_b32 v{57+2*(j%2)}, s23, v{w}')
            if i == 0:
                k(f'v_mul_f32 v{48+2*j}, v{8+i}, v{56+2*(j%2)}')
                k(f'v_mul_f32 v{49+2*j}, v{8+i}, v{57+2*(j%2)}')
            else:
                k(f'v_fmac_f32 v{48+2*j}, v{8+i}, v{56+2*(j%2)}')
                k(f'v_fmac_f32 v{49+2*j}, v{8+i}, v{57+2*(j%2)}')
    k.stamp(2)
    for mod in ('quad_perm:[2,3,0,1]', 'row_ror:4', 'row_ror:8'):
        for j in range(8):
            k(f'v_add_f32_dpp v{48+j}, v{48+j}, v{48+j} {mod} row_mask:0xf bank_mask:0xf')
    k(f'''
    s_and_saveexec_b64 s[40:41], vcc
    ds_write_b128 v4, v[48:51]
    ds_write_b128 v4, v[52:55] offset:16
    s_mov_b64 exec, s[40:41]
    v_and_b32 v3, 15, v0
    v_lshlrev_b32 v4, 2, v3
    s_waitcnt lgkmcnt(0)
    s_barrier
    s_cmp_lg_u32 s18, 0
    s_cbranch_scc1 k1_end
    ''')
    for i in range(6):
        k(f'ds_read2_b32 v[{8+2*i}:{9+2*i}], v4 offset0:{i*32} offset1:{i*32+16}')
    k(f'''
    s_lshl_b32 s20, s19, 6
    s_lshl_b32 s21, s19, 5
    v_lshlrev_b32 v5, 1, v3
    s_mul_i32 s22, s19, 1821
    s_lshr_b32 s22, s22, 16
    s_mov_b32 s23, 0x12
    s_bitcmp1_b32 s23, s22
    s_cselect_b32 s22, 1.0, 0
    v_cmp_gt_u32 vcc, 16, v0
    s_waitcnt lgkmcnt(0)
    ''')
    for i in range(6):
        k(f'v_add_f32 v{8+2*i}, v{8+2*i}, v{9+2*i}')
    k(f'''
    v_add_f32 v8, v8, v10
    v_add_f32 v12, v12, v14
    v_add_f32 v16, v16, v18
    v_add_f32 v8, v8, v12
    v_add_f32 v8, v8, v16
    v_cvt_pk_bf16_f32 v8, v8, v8
    v_lshlrev_b32 v8, 16, v8
    v_add_f32 v8, s22, v8
    v_cvt_pk_bf16_f32 v9, v8, v8
    v_lshlrev_b32 v8, 16, v9
    s_and_saveexec_b64 s[40:41], vcc
    buffer_store_dword v8, v4, s[32:35], s20 offen
    buffer_store_short v9, v5, s[36:39], s21 offen
    s_endpgm
    ''')
    t = [d if d >= 0 else 0 for d in VSLOT] + [0] * (24 - len(VSLOT))
    lo = sum(t[i] << (5 * i) for i in range(12)); hi = sum(t[12 + i] << (5 * i) for i in range(12))
    k(f'''
k1_rel:
    s_lshl_b32 s19, s2, 2
    s_add_u32 s19, s19, s18
    s_cmp_ge_u32 s19, 180
    s_cbranch_scc1 k1_end
    s_mul_i32 s20, s19, 7282
    s_lshr_b32 s20, s20, 16            ; nt = W / 9
    s_mul_i32 s21, s20, 9
    s_sub_u32 s21, s19, s21            ; q = W % 9
    v_and_b32 v3, 31, v2               ; rho
    v_lshrrev_b32 v4, 5, v2            ; h
    v_and_b32 v5, 19, v3
    v_and_b32 v6, 4, v3
    v_lshl_or_b32 v5, v6, 1, v5
    v_and_b32 v6, 8, v3
    v_lshrrev_b32 v6, 1, v6
    v_or_b32 v5, v5, v6
    s_mov_b32 s27, 0x00020000
    s_cmp_ge_u32 s20, 18
    s_cbranch_scc1 k1_kv
    s_movk_i32 s22, 1152
    s_mov_b32 s26, {D*D*2}
    s_cmp_ge_u32 s20, 16
    s_cbranch_scc1 k1_q2
    v_lshrrev_b32 v6, 4, v5
    v_lshl_add_u32 v6, v6, 1, v5
    s_mul_i32 s23, s20, 36
    v_add_u32 v6, s23, v6              ; col
    s_waitcnt lgkmcnt(0)
    s_mov_b32 s24, s6
    s_mov_b32 s25, s7
    s_branch k1_go
k1_q2:
    v_and_b32 v6, 7, v5
    v_lshrrev_b32 v7, 4, v5
    v_lshl_add_u32 v6, v7, 3, v6       ; r
    v_and_b32 v7, 8, v5                ; 8*hh
    v_lshrrev_b32 v8, 1, v6
    v_add_u32 v7, v7, v8
    v_mul_u32_u24 v7, 18, v7
    v_and_b32 v6, 1, v6
    v_add_u32 v6, v6, v7
    s_mul_i32 s23, s20, 288
    s_sub_u32 s23, s23, {16*288 - 16}
    v_add_u32 v6, s23, v6
    s_waitcnt lgkmcnt(0)
    s_mov_b32 s24, s6
    s_mov_b32 s25, s7
    s_branch k1_go
k1_kv:
    s_movk_i32 s22, 36
    s_mov_b32 s26, {D*DH*2}
    s_cmp_ge_u32 s20, 19
    s_cbranch_scc1 k1_v
    ; c<16 -> c ; else 16 + (c&1)
    v_and_b32 v6, 17, v5
    v_cmp_gt_u32 vcc, 16, v5
    s_waitcnt lgkmcnt(0)
    s_mov_b32 s24, s8
    s_mov_b32 s25, s9
    v_cndmask_b32 v6, v6, v5, vcc
    s_branch k1_go
k1_v:
    v_mov_b32 v8, 0x{lo & 0xffffffff:08x}
    v_mov_b32 v9, 0x{lo >> 32:08x}
    v_mov_b32 v10, 0x{hi & 0xffffffff:08x}
    v_mov_b32 v11, 0x{hi >> 32:08x}
    v_cmp_le_u32 vcc, 12, v3
    v_subrev_u32 v6, 12, v3
    v_min_u32 v6, 11, v6
    v_cndmask_b32 v6, v3, v6, vcc
    v_cndmask_b32 v8, v8, v10, vcc
    v_cndmask_b32 v9, v9, v11, vcc
    v_mul_u32_u24 v6, 5, v6
    v_lshrrev_b64 v[8:9], v6, v[8:9]
    v_and_b32 v6, 31, v8
    s_waitcnt lgkmcnt(0)
    s_mov_b32 s24, s10
    s_mov_b32 s25, s11
k1_go:
    s_lshl_b32 s23, s22, 3
    v_mul_u32_u24 v7, s23, v4
    v_lshl_add_u32 v7, v6, 1, v7
    s_lshl_b32 s28, s21, 6
    s_mul_i32 s28, s28, s22
    ''')
    for i in range(4):
        for j in range(8):
            k(f'buffer_load_ushort v{16+8*i+j}, v7, s[24:27], s28 offen')
            k(f's_add_u32 s28, s28, s22')
        if i < 3:
            k(f's_add_u32 s28, s28, s23')
    k.stamp(1)
    k.srd(32, 16, 17, WS['WQKV'][1], WS['WQKV'][0])
    k(f'''
    s_mul_i32 s29, s20, 36
    s_lshl_b32 s30, s21, 2
    s_add_u32 s29, s29, s30
    s_lshl_b32 s29, s29, 10
    v_lshlrev_b32 v8, 4, v2
    buffer_load_dword v70, v8, s[32:35], s29 offen
    ''')
    for i in range(4):
        k(f's_waitcnt vmcnt({25 - 8*i + i})')
        for j in range(4):
            k(f'v_lshl_or_b32 v{48+4*i+j}, v{16+8*i+2*j+1}, 16, v{16+8*i+2*j}')
        k(f'buffer_store_dwordx4 v[{48+4*i}:{51+4*i}], v8, s[32:35], s29 offen offset:{i*1024}')
    k.stamp(2)
    k('s_endpgm')
    k(f'''
k1_ln:
    s_cmp_ge_u32 s2, {B_P}
    s_cbranch_scc1 k1_warm
    s_sub_u32 s19, s2, {B_L}
    s_and_b32 s20, s19, 7
    s_lshl_b32 s20, s20, 4
    s_lshr_b32 s19, s19, 3
    s_add_u32 s19, s19, s20
    s_mul_i32 s19, s19, {16*1152}
    v_lshrrev_b32 v3, 4, v0
    v_mul_u32_u24 v3, 1152, v3
    v_and_b32 v4, 15, v0
    v_lshl_add_u32 v3, v4, 3, v3       ; voff
    s_waitcnt lgkmcnt(0)
    ''')
    k.stamp(0)
    k.srd(24, 4, 5, S * D * 2)
    for c in range(9):
        k(f'buffer_load_dwordx2 v[{8+2*c}:{9+2*c}], v3, s[24:27], s19 offen offset:{c*128}')
    k.srd(28, 16, 17, WS['XN'][1], WS['XN'][0])
    k('buffer_load_dword v70, v3, s[28:31], s19 offen')
    k('s_mov_b32 s23, 0xffff0000')
    for c in range(9):
        k(f's_waitcnt vmcnt({9-c})')
        for j in range(2):
            w = 8 + 2 * c + j
            k(f'v_lshlrev_b32 v{32+4*c+2*j}, 16, v{w}')
            k(f'v_and_b32 v{33+4*c+2*j}, s23, v{w}')
    k.stamp(1)
    k('v_add_f32 v4, v32, v33')
    k('v_add_f32 v5, v34, v35')
    for i in range(4, 36, 2):
        k(f'v_add_f32 v4, v4, v{32+i}')
        k(f'v_add_f32 v5, v5, v{33+i}')
    k('v_add_f32 v4, v4, v5')
    for mod in ('quad_perm:[1,0,3,2]', 'quad_perm:[2,3,0,1]', 'row_ror:4', 'row_ror:8'):
        k(f'v_add_f32_dpp v4, v4, v4 {mod} row_mask:0xf bank_mask:0xf')
    inv = struct.unpack('<I', struct.pack('<f', 1.0 / 576))[0]
    eps = struct.unpack('<I', struct.pack('<f', 1e-5))[0]
    k(f'v_mul_f32 v4, 0x{inv:08x}, v4')
    for i in range(36):
        k(f'v_sub_f32 v{32+i}, v{32+i}, v4')
    k('v_mul_f32 v4, v32, v32')
    k('v_mul_f32 v5, v33, v33')
    for i in range(2, 36, 2):
        k(f'v_fmac_f32 v4, v{32+i}, v{32+i}')
        k(f'v_fmac_f32 v5, v{33+i}, v{33+i}')
    k('v_add_f32 v4, v4, v5')
    for mod in ('quad_perm:[1,0,3,2]', 'quad_perm:[2,3,0,1]', 'row_ror:4', 'row_ror:8'):
        k(f'v_add_f32_dpp v4, v4, v4 {mod} row_mask:0xf bank_mask:0xf')
    k(f'''
    v_mov_b32 v5, 0x{eps:08x}
    v_fmac_f32 v5, 0x{inv:08x}, v4
    v_rsq_f32 v4, v5
    ''')
    for i in range(36):
        k(f'v_mul_f32 v{32+i}, v{32+i}, v4')
    k.stamp(2)
    for c in range(9):
        k(f'v_cvt_pk_bf16_f32 v{8+2*c}, v{32+4*c}, v{33+4*c}')
        k(f'v_cvt_pk_bf16_f32 v{9+2*c}, v{34+4*c}, v{35+4*c}')
        k(f'buffer_store_dwordx2 v[{8+2*c}:{9+2*c}], v3, s[28:31], s19 offen offset:{c*128}')
    k(f'''
    s_endpgm
k1_warm:
    s_cmp_ge_u32 s2, {K1_GRID}
    s_cbranch_scc1 k1_end
    ''')
    k('s_cmp_lg_u32 s18, 0')
    k('s_cbranch_scc1 k1_warm2')
    k.prefetch_code([('k3_kernel', 0), ('k3_kernel', 1)] + ([('k4_kernel', 0), ('k7_kernel', 0)] if SPLIT else [('k8_kernel', 0)]), 24, 3, 'v8', 2)
    k('s_endpgm')
    k('k1_warm2:')
    k('s_cmp_lg_u32 s18, 1')
    k('s_cbranch_scc1 k1_warm3')
    k.prefetch_code([('k5_kernel', 0), ('k5_kernel', 1), ('k6_kernel', 0), ('k6_kernel', 1)] if SPLIT else [('k8_kernel', c) for c in (1, 2, 3, 4)], 24, 3, 'v8', 2)
    k('s_endpgm')
    k(f'''
k1_warm3:
    s_cmp_lg_u32 s18, 2
    s_cbranch_scc1 k1_zero
    ''')
    k('s_endpgm')
    k(f'''
k1_zero:
    s_cmp_lg_u32 s2, {B_P}
    s_cbranch_scc1 k1_end
    v_lshlrev_b32 v3, 7, v2
    v_mov_b32 v4, 0
    s_mov_b32 s3, 0
    s_waitcnt lgkmcnt(0)
    ''')
    k.srd(24, 16, 17, WS['FLAGS'][1], WS['FLAGS'][0])
    for i in range(7):
        k('buffer_store_dword v4, v3, s[24:27], s3 offen')
        k('s_add_u32 s3, s3, 8192')
    k('''
k1_end:
    s_endpgm
    ''')
    return k.finish(vgpr=72)
```
